```python
import torch

def _softmax(x, axis=-1):
    return torch.softmax(x, dim=axis)
def _gelu(x):
    return torch.nn.functional.gelu(x, approximate="tanh")
def _silu(x):
    return torch.nn.functional.silu(x)
def _sigmoid(x):
    return torch.sigmoid(x)
def _layernorm(x, axis=-1, eps=1e-5):
    m = x.mean(dim=axis, keepdim=True)
    v = x.var(dim=axis, keepdim=True, unbiased=False)
    return (x - m) / torch.sqrt(v + eps)
def _scatter_add(tgt, idx, src, axis=0):
    return tgt.clone().index_add_(axis, idx, src)
def _segment_sum(src, seg, n):
    out = torch.zeros((n,) + src.shape[1:], dtype=src.dtype)
    return out.index_add_(0, seg, src)
def _pad(x, pw):
    flat = tuple(v for pair in reversed(pw) for v in pair)
    return torch.nn.functional.pad(x, flat)

kernel_name = 'standalone__mha_softmax__near_ridge'

def setup_inputs():

    _w = (lambda a: (lambda t: t.to(torch.bfloat16) if t.is_floating_point() else t)(torch.as_tensor(a)))
    B, H, Sq, Sk, D = 8, 32, 736, 512, 128
    return {
        "q": _w((lambda *s: torch.randn(*s, dtype=torch.bfloat16) * 0.8)(B, H, Sq, D)),
        "k": _w((lambda *s: torch.randn(*s, dtype=torch.bfloat16) * 0.8)(B, H, Sk, D)),
        "v": _w((lambda *s: torch.randn(*s, dtype=torch.bfloat16) * 0.05)(B, H, Sk, D)),
    }

def reference(q, k, v):
    scale = q.shape[-1] ** -0.5
    scores = torch.einsum("bhqd,bhkd->bhqk", q, k) * scale
    p = _softmax(scores, axis=-1)
    return torch.einsum("bhqk,bhkd->bhqd", p, v)
```

```python
import re

def R(lo, n=1):
    return list(range(lo, lo + n))

def vr(lo, n=1):
    p = "v"
    if lo >= 256:
        p = "a"; lo -= 256
    return f"{p}{lo}" if n == 1 else f"{p}[{lo}:{lo+n-1}]"

class I:
    __slots__ = ("t", "rd", "wr", "k", "passes", "srcc", "meta", "meta2")
    def __init__(s, t, rd=(), wr=(), k="valu", passes=0, srcc=(), meta=None):
        s.t = t; s.rd = list(rd); s.wr = list(wr); s.k = k; s.passes = passes; s.srcc = list(srcc); s.meta = meta; s.meta2 = None
    def __repr__(s): return s.t

def mfma16(d, a, b, c):
    cs = "0" if c is None else vr(c, 4)
    return I(f"v_mfma_f32_16x16x32_bf16 {vr(d,4)}, {vr(a,4)}, {vr(b,4)}, {cs}",
             rd=R(a,4)+R(b,4)+([] if c is None else R(c,4)), wr=R(d,4), k="mfma", passes=4,
             srcc=[] if c is None else R(c,4))
def mfma32(d, a, b, c):
    cs = "0" if c is None else vr(c, 16)
    return I(f"v_mfma_f32_32x32x16_bf16 {vr(d,16)}, {vr(a,4)}, {vr(b,4)}, {cs}",
             rd=R(a,4)+R(b,4)+([] if c is None else R(c,16)), wr=R(d,16), k="mfma", passes=8,
             srcc=[] if c is None else R(c,16))
def ds128(d, addr, off):
    return I(f"ds_read_b128 {vr(d,4)}, v{addr} offset:{off}", rd=[addr], wr=R(d,4), k="ds")
def dstr(d, addr, off):
    return I(f"ds_read_b64_tr_b16 {vr(d,2)}, v{addr} offset:{off}", rd=[addr], wr=R(d,2), k="ds")
def valu(t, rd, wr): return I(t, rd=rd, wr=wr, k="valu")
def trans(t, rd, wr): return I(t, rd=rd, wr=wr, k="trans")
def salu(t): return I(t, k="salu")
def raw(t, k="raw"): return I(t, k=k)

def states(i):
    if i.k in ("label", "need"): return 0
    m = re.match(r"s_nop (\d+)", i.t)
    if m: return int(m.group(1)) + 1
    return 1

def need(prod, cons):
    n = 0
    pw = set(prod.wr)
    if prod.k in ("valu", "trans", "perm"):
        if cons.k == "mfma" and pw & set(cons.rd): n = max(n, 2)
        if cons.k == "perm" and pw & (set(cons.rd) | set(cons.wr)): n = max(n, 2)
        if prod.k == "trans" and cons.k in ("valu", "perm", "vmem", "dsw", "ds") and pw & set(cons.rd): n = max(n, 1)
        if cons.k == "rdlane" and pw & set(cons.rd): n = max(n, 1)
    if prod.k == "mfma":
        big = {4: 8, 8: 12}[prod.passes]
        ovl = {4: 6, 8: 10}[prod.passes]
        if cons.k == "mfma":
            ab = set(cons.rd) - set(cons.srcc)
            if pw & ab: n = max(n, big)
            if pw & set(cons.srcc):
                if not (cons.srcc == prod.wr and cons.passes == prod.passes): n = max(n, ovl)
            elif pw & set(cons.wr):
                n = max(n, ovl)
        elif cons.k in ("valu", "trans", "perm", "vmem", "ds", "dsw", "rdlane"):
            if pw & (set(cons.rd) | set(cons.wr)): n = max(n, big)
            if cons.k in ("valu", "trans", "perm") and set(prod.srcc) & set(cons.wr):
                n = max(n, {4: 3, 8: 7}[prod.passes])
    if prod.k == "vmem" and prod.meta == "store":
        if cons.k in ("valu", "trans", "perm") and set(prod.rd) & set(cons.wr): n = max(n, 2)
        elif set(prod.rd) & set(cons.wr): n = max(n, 1)
    return n

def finalize(stream, pending=None, history=None, maxlgkm=15):
    out = []
    pend = list(pending or [])
    hist = list(history or [])
    for ins in stream:
        if ins.k == "waitlgkm0":
            out.append(I("s_waitcnt lgkmcnt(0)", k="wait")); hist.append(out[-1]); pend = []; continue
        if ins.k == "waitall":
            out.append(ins); hist.append(ins); pend = []; continue
        touched = set(ins.rd) | set(ins.wr)
        idx = -1
        for j, d in enumerate(pend):
            if d & touched: idx = j
        if idx >= 0:
            n = len(pend) - 1 - idx
            n = min(n, maxlgkm)
            w = I(f"s_waitcnt lgkmcnt({n})", k="wait")
            out.append(w); hist.append(w)
            pend = pend[len(pend) - n:] if n else []
        dist = 0; req = 0
        for p in reversed(hist[-24:]):
            nd = need(p, ins)
            if nd > dist: req = max(req, nd - dist)
            dist += states(p)
            if dist >= 20: break
        if req > 0:
            w = I(f"s_nop {req-1}", k="nop")
            out.append(w); hist.append(w)
        out.append(ins); hist.append(ins)
        if ins.k in ("ds", "dsw"):
            pend.append(set(ins.wr) if ins.k == "ds" else set())
            assert len(pend) <= 40
    return out, pend

def text(stream):
    L = []
    for i in stream:
        L.append(i.t if i.k == "label" else "    " + i.t)
    return "\n".join(L)

def merge(main, fill, weights=None):
    n = len(main); out = []
    m = len(fill); k = 0
    for i, grp in enumerate(main):
        out += grp
        tgt = (i + 1) * m // n
        while k < tgt:
            f = fill[k]
            out += f if isinstance(f, list) else [f]
            k += 1
    return out
```

```python
import sys, argparse
from asmlib import *

NAME = "standalone__mha_softmax__near_ridge"
QBYTES = 8*32*736*128*2
KBYTES = 8*32*512*128*2
PITCH = 1056
HALF = 16*PITCH
SLOT = 2*HALF
NSLOT = 4
LDS_BYTES = NSLOT*SLOT
CSCALE = 0x3e0293ee
THRESH = 0x4e800000

O0, S0, P0 = 0, 128, 192
MC, RL = 224, 228
AK, AV, AK0, AV0, DV, QV, OV = 232, 233, 234, 235, 236, 237, 238
T0 = 240
A = 256
Q0, QN0, F0, L0, ONES = A+0, A+64, A+128, A+160, A+176
NF, D = 8, 6
SK, SV, SQL, SQH, SOL, SOH = 4, 8, 12, 16, 20, 24
sC, sW = 28, 29
sKV = 30
sQO = 33
sHN = 36
sKO, sVO, sSD, sDM, sRD, sCNT, sITEM, sFLAG = 40, 41, 42, 43, 44, 45, 46, 47
sT = 48
sOO = 52
sQS = 56
sW4224 = 60
sTHR = 61
sLV = 39
sKV0 = 64
sEX = 68

def srd(n): return f"s[{n}:{n+3}]"
def Sreg(buf, b, u): return S0 + buf*32 + b*8 + u*4
def Preg(buf, b): return P0 + buf*16 + b*4
def Oreg(b, n): return O0 + b*32 + n*4

class F:
    def __init__(s, ins, tgt, cost=4, after=-1, before=10**9):
        s.ins = ins if isinstance(ins, list) else [ins]
        s.tgt = tgt; s.cost = cost; s.after = after; s.before = before

def indep(a, b):
    for x in a.ins:
        for y in b.ins:
            if set(x.wr) & (set(y.rd) | set(y.wr)) or set(y.wr) & set(x.rd): return False
            if x.k in ("ds", "vmem", "salu", "raw") and y.k in ("ds", "vmem", "salu", "raw"): return False
    return True

def schedule(mf, free, fill):
    n = len(mf)
    fill = sorted(fill, key=lambda f: f.tgt)
    total = sum(f.cost for f in fill)
    out = []
    done = 0
    for g in range(n):
        out.append(mf[g])
        out += free.get(g, [])
        want = max(8.0, 0)
        goal = total*(g+1)/n
        used = 0
        while fill:
            must = [f for f in fill if f.before <= g]
            room = max(8 - used, 0)
            behind = (done + 3.99 < goal)
            pick = None
            if room == 0 and not behind and not must: break
            for i, f in enumerate(fill[:6] if not must else fill):
                if f.after > g: continue
                if not must and f.tgt > g + 3.0: break
                if not all(indep(f, h) for h in fill[:i]): continue
                if must:
                    pick = i; break
                if room > 0:
                    if f.cost <= room: pick = i; break
                else:
                    if f.cost <= 4: pick = i; break
            if pick is None:
                if room > 0 and used == 0 or behind:
                    f = fill[0]
                    if f.after <= g and f.tgt <= g + 1.0 and (used == 0 or behind):
                        pick = 0
                if pick is None: break
            f = fill.pop(pick)
            assert f.after <= g <= f.before, (f.ins, g, f.after, f.before)
            out += f.ins
            used += f.cost; done += f.cost
    for f in fill:
        assert f.before >= n, (f.ins, f.before)
        out += f.ins
    return out

def tag(x, ph):
    for e in x:
        for i in (e.ins if isinstance(e, F) else [e]):
            tag.n += 1
            i.meta2 = (ph, tag.n)
    return x
tag.n = 0

def verify_order(stream):
    L = [i for i in stream if getattr(i, "meta2", None) is not None]
    un = [i.t for i in stream if getattr(i, "meta2", None) is None and (i.rd or i.wr) and i.k != "need"]
    assert not un, un[:5]
    for a in range(len(L)):
        x = L[a]; xw = set(x.wr); xr = set(x.rd)
        for b in range(a+1, len(L)):
            y = L[b]
            if y.meta2 < x.meta2:
                if xw & (set(y.rd) | set(y.wr)) or xr & set(y.wr):
                    raise AssertionError(f"order violated: '{x.t}' {x.meta2} scheduled before '{y.t}' {y.meta2}")

def need_regs(regs):
    return I("", rd=regs, k="need")

def grp_list(qk=True):
    L = []
    for per in range(2):
        for i in range(8):
            L.append(("K", per, i)); L.append(("V", per, i))
    return L

def frag_reads(kind, per, i, slot):
    f = F0 + 4*slot
    if kind == "K":
        u, s = i // 4, i % 4
        return [ds128(f, AK, (2*per+u)*256 + s*64)]
    off = (2*per)*256 + i*32
    return [dstr(f, AV, off), dstr(f+2, AV, off+256)]

def qk_mfmas(per, i, slot, qbase):
    u, s = i // 4, i % 4
    buf = per
    return [mfma16(Sreg(buf,b,u), F0+4*slot, qbase + b*16 + s*4, Sreg(buf,b,u) if s else None) for b in range(4)]

def pv_mfmas(per, n, slot, first):
    buf = per
    return [mfma16(Oreg(b,n), F0+4*slot, Preg(buf,b), None if first else Oreg(b,n)) for b in range(4)]

def rs_mfmas(per, first):
    return [mfma16(L0+4*b, ONES, Preg(per,b), None if first else L0+4*b) for b in range(4)]

def softmax_fill(per, g0, g1, before):
    buf = 1 - per
    L = []
    step = (g1 - g0 - 4.0) / 32.0
    e = 0
    for u in range(2):
        for b in range(4):
            for r in range(4):
                x = Sreg(buf,b,u) + r
                t = g0 + e*step
                L.append(F(valu(f"v_fma_f32 v{x}, v{x}, s{sC}, v{MC+b}", [x, MC+b], [x]), t, 4, after=int(g0)))
                L.append(F(trans(f"v_exp_f32 v{x}, v{x}", [x], [x]), t + 1.6, 8, after=int(g0)))
                if r & 1:
                    p = Preg(buf,b) + 2*u + r//2
                    L.append(F(valu(f"v_cvt_pk_bf16_f32 v{p}, v{x-1}, v{x}", [x-1, x], [p]), t + 3.4, 4, after=int(g0), before=before))
                e += 1
    return L

def max_fill(buf, g0, step):
    L = []
    ops = []
    for b in range(4):
        x = Sreg(buf,b,0); t = T0 + 2*b; t2 = t + 1
        ops.append([
            valu(f"v_max3_f32 v{t}, v{x}, v{x+1}, v{x+2}", [x,x+1,x+2], [t]),
            valu(f"v_max3_f32 v{t}, v{t}, v{x+3}, v{x+4}", [t,x+3,x+4], [t]),
            valu(f"v_max3_f32 v{t}, v{t}, v{x+5}, v{x+6}", [t,x+5,x+6], [t]),
            valu(f"v_max_f32 v{t}, v{t}, v{x+7}", [t,x+7], [t]),
            valu(f"v_mov_b32 v{t2}, v{t}", [t], [t2]),
            I(f"v_permlane16_swap_b32 v{t}, v{t2}", rd=[t,t2], wr=[t,t2], k="perm"),
            valu(f"v_max_f32 v{t}, v{t}, v{t2}", [t,t2], [t]),
            valu(f"v_mov_b32 v{t2}, v{t}", [t], [t2]),
            I(f"v_permlane32_swap_b32 v{t}, v{t2}", rd=[t,t2], wr=[t,t2], k="perm"),
            valu(f"v_max_f32 v{t}, v{t}, v{t2}", [t,t2], [t]),
            valu(f"v_mul_f32 v{MC+b}, s{sT+3}, v{t}", [t], [MC+b]),
        ])
    k = 0
    for j in range(len(ops[0])):
        for b in range(4):
            L.append(F(ops[b][j], g0 + k*step, 4, after=int(g0))); k += 1
    return L, g0 + k*step

def dma_fill(t0, step, free):
    L = []
    for j in range(8):
        isv = j >= 4; i = j % 4
        m0 = salu(f"s_add_u32 m0, s{sDM}, {i*800 + (HALF if isv else 0)}")
        ld = I(f"buffer_load_dwordx4 v{DV}, {srd(SV if isv else SK)}, s{sVO if isv else sKO} offen offset:{i*256} lds",
               rd=[DV], k="vmem")
        g = int(t0 + j*step)
        free.setdefault(g, []).append(m0)
        L.append(F(ld, g + 0.5, 4, after=g+1, before=g+2))
    return L

def dma_now():
    L = []
    for j in range(8):
        isv = j >= 4; i = j % 4
        L.append(salu(f"s_add_u32 m0, s{sDM}, {i*800 + (HALF if isv else 0)}"))
        L.append(salu("s_nop 0"))
        L.append(I(f"buffer_load_dwordx4 v{DV}, {srd(SV if isv else SK)}, s{sVO if isv else sKO} offen offset:{i*256} lds",
               rd=[DV], k="vmem"))
    return L

def dma_advance():
    return [
        salu(f"s_add_u32 s{sSD}, s{sSD}, 1"),
        salu(f"s_mov_b32 s{sVO}, s{sKO}"),
        salu(f"s_mov_b32 s{SV+2}, s{SK+2}"),
        salu(f"s_add_u32 s{sKO}, s{sKO}, 16384"),
        salu(f"s_and_b32 s{sT}, s{sSD}, 7"),
        salu(f"s_cselect_b32 s{sKO}, s{sKO}, s{sKV+1}"),
        salu(f"s_cselect_b32 s{sKV+1}, s{sKV+1}, s{sKV+2}"),
        salu(f"s_cmp_lt_u32 s{sSD}, 24"),
        salu(f"s_cselect_b32 s{SK+2}, s{SK+2}, 0"),
    ]

def slot_advance():
    return [
        salu(f"s_add_u32 s{sDM}, s{sRD}, s{sW4224}"),
        salu(f"s_add_u32 s{sRD}, s{sRD}, {SLOT}"),
        salu(f"s_cmp_lt_u32 s{sRD}, {NSLOT*SLOT}"),
        salu(f"s_cselect_b32 s{sRD}, s{sRD}, 0"),
    ]

def q_loads(qbase):
    L = []
    for b in range(4):
        for s in range(4):
            r = qbase + b*16 + s*4
            L.append(I(f"buffer_load_dwordx4 {vr(r,4)}, v{QV}, {srd(SQL if b < 2 else SQH)}, s{sQS+b} offen offset:{s*64}",
                       rd=[QV], wr=R(r,4), k="vmem"))
    return L

def epi_ops(b, m):
    r = Oreg(b, 2*m)
    L = [valu(f"v_mul_f32 v{r+i}, v{r+i}, v{RL+b}", [r+i, RL+b], [r+i]) for i in range(8)]
    L += [valu(f"v_cvt_pk_bf16_f32 v{r+i}, v{r+2*i}, v{r+2*i+1}", [r+2*i, r+2*i+1], [r+i]) for i in range(4)]
    L += [I(f"v_permlane16_swap_b32 v{r}, v{r+2}", rd=[r, r+2], wr=[r, r+2], k="perm"),
          I(f"v_permlane16_swap_b32 v{r+1}, v{r+3}", rd=[r+1, r+3], wr=[r+1, r+3], k="perm")]
    L += [I(f"buffer_store_dwordx4 {vr(r,4)}, v{OV}, {srd(SOL if b < 2 else SOH)}, s{sOO+b} offen offset:{m*64}",
            rd=R(r,4)+[OV], k="vmem", meta="store")]
    return L

def epi_fill(m, t0, t1, after, before):
    ops = [epi_ops(b, m) for b in range(4)]
    L = []
    n = 4*len(ops[0]); k = 0
    for j in range(len(ops[0])):
        for b in range(4):
            L.append(F(ops[b][j], t0 + (t1-t0)*k/n, 4, after=after, before=before)); k += 1
    return L

def l_ops():
    L = []
    for b in range(4):
        L.append(valu(f"v_accvgpr_read_b32 v{RL+b}, {vr(L0+4*b)}", [L0+4*b], [RL+b]))
    L.append(valu(f"v_max3_f32 v{T0+8}, v{RL}, v{RL+1}, v{RL+2}", [RL,RL+1,RL+2], [T0+8]))
    L.append(valu(f"v_max_f32 v{T0+8}, v{T0+8}, v{RL+3}", [T0+8,RL+3], [T0+8]))
    L.append(valu(f"v_cmp_nge_f32 vcc, s{sTHR}, v{T0+8}", [T0+8], ["vcc"]))
    for b in range(4):
        L.append(trans(f"v_rcp_f32 v{RL+b}, v{RL+b}", [RL+b], [RL+b]))
    return L

def flag_ops():
    return [salu("s_cmp_lg_u64 vcc, 0"), salu(f"s_addc_u32 s{sFLAG}, s{sFLAG}, s{sFLAG}")]

def item_advance():
    L = []
    for b in range(4):
        L.append(salu(f"s_add_u32 s{sOO+b}, s{sQO}, {b*4096}"))
    L.append(salu(f"s_mov_b32 s{SOH+2}, s{sHN}"))
    L += [salu(f"s_mov_b32 s{sQO}, s{sQO+1}"), salu(f"s_mov_b32 s{sQO+1}, s{sQO+2}"),
          salu(f"s_mov_b32 s{sHN}, s{sHN+1}"), salu(f"s_mov_b32 s{sHN+1}, s{sHN+2}")]
    for b in range(4):
        L.append(salu(f"s_add_u32 s{sQS+b}, s{sQO+1}, {b*4096}"))
    L.append(salu(f"s_mov_b32 s{SQL+2}, s{sLV}"))
    L.append(salu(f"s_min_u32 s{SQH+2}, s{sHN+1}, s{sLV}"))
    L.append(salu(f"s_mov_b32 s{sLV}, 0"))
    return L

def body(kind, vm=16):
    has_qk = kind != "E"
    has_pv = kind != "P"
    qbase = QN0 if kind == "T7" else Q0
    G = grp_list()
    if kind == "P":
        G = [g for g in G if g[0] == "K"]
    NG = len(G)
    mf = []; gstart = []; gend = []; free = {}; fill = []
    pstart = [0, 0]; rs_end = [0, 0]; pv_first = {}; pv_last = {}; firstP = [None, None]
    for gi, (k, per, i) in enumerate(G):
        slot = gi % NF
        if i == 0 and k == "K": pstart[per] = len(mf)
        gstart.append(len(mf))
        if k == "K":
            if has_qk: mf += tag(qk_mfmas(per, i, slot, qbase), 100*per + 10 + gi + 0.5)
        else:
            first = (kind == "T0" and per == 0)
            if i == 0:
                firstP[per] = len(mf)
                mf += tag(rs_mfmas(per, first), 100*per + 10 + gi + 0.5); rs_end[per] = len(mf) - 1
                gstart[-1] = len(mf)
            pv_first[(per, i)] = len(mf)
            mf += tag(pv_mfmas(per, i, slot, first), 100*per + 10 + gi + 0.5)
            pv_last[(per, i)] = len(mf) - 1
        gend.append(len(mf) - 1)
    n = len(mf)
    for gi, (k, per, i) in enumerate(G):
        if k == "K" and not has_qk: continue
        if gi >= D:
            src = gi - D
            war = gend[gi - NF] if gi >= NF else -1
            rds = tag(frag_reads(k, per, i, gi % NF), 100*per + 10 + gi)
            for q, rd in enumerate(rds):
                fill.append(F(rd, max(gstart[src], 0) + 0.5 + 1.5*q, 4, after=max(war, 0), before=max(gstart[gi] - 6, 0)))
        if gstart[gi] > 0:
            free.setdefault(gstart[gi]-1, []).append(need_regs(R(F0 + 4*(gi % NF), 4)))
    if kind != "E":
        gb = gend[NG - 4]
        for f in fill: f.before = min(f.before, gend[NG - D])
        free.setdefault(gb, []).extend([raw(f"s_waitcnt vmcnt({vm}) lgkmcnt(0)", k="waitall"), raw("s_barrier")])
        fill += tag([F(valu(f"v_add_u32 v{AK}, s{sRD}, v{AK0}", [AK0], [AK]), gb - 2, 4, after=gend[NG-D]+1, before=gb),
                     F(valu(f"v_add_u32 v{AV}, s{sRD}, v{AV0}", [AV0], [AV]), gb - 2, 4, after=gend[NG-D]+1, before=gb)], 300)
        GN = grp_list()
        t = gb + 0.1
        for j in range(D):
            k, per, i = GN[j]
            war = gend[NG + j - NF]
            for rd in tag(frag_reads(k, per, i, j % NF), 301):
                fill.append(F(rd, t, 4, after=max(gb, war), before=n-1)); t += 1.0
        free.setdefault(n-1, []).append(need_regs(R(F0, 4)))
    if kind != "P":
        fill += tag(softmax_fill(0, 0, pstart[1] + 2, before=firstP[1] - 1), 5)
    if kind in ("T7", "P"):
        g0 = pstart[1] + 2
        mx, gm = max_fill(0, g0, 0.35)
        fill += tag(mx, 101)
        fill += tag(softmax_fill(1, gm, n, before=n-1), 105)
    elif kind != "E":
        fill += tag(softmax_fill(1, pstart[1] - 1, n, before=n-1), 105)
    sal = []
    if kind in ("S", "T7", "T0"):
        t0 = 14 if kind != "T0" else pstart[1] + 2
        step = (gb - 16 - t0) / 8.0
        fill += tag(dma_fill(t0, step, free), 1)
        pre = dma_advance()
        g = 0
        for s in pre:
            while g in free: g += 1
            free[g] = [s]
        assert g < t0, (g, t0)
    if kind != "E":
        g = gb - 14
        for s in slot_advance():
            while g in free: g += 1
            free[g] = [s]
        assert g <= gend[NG-D], (g, gend[NG-D])
    if kind == "T7":
        for r in range(64):
            fill += tag([F(valu(f"v_accvgpr_mov_b32 {vr(Q0+r)}, {vr(QN0+r)}", [QN0+r], [Q0+r]), 1 + r*(pstart[1]-2)/64.0, 4)], 1)
    if kind in ("T7", "E"):
        g = 16 if kind == "T7" else 1
        for s in item_advance():
            while g in free: g += 1
            free[g] = [s]
        lo = tag(l_ops(), 200)
        g0 = rs_end[1] + 3
        for j, o in enumerate(lo):
            fill.append(F(o, g0 + 0.3*j, 8 if o.k == "trans" else 4, after=g0, before=g0 + 6))
        g = g0 + 8
        while g in free: g += 1
        free[g] = flag_ops()
        ms = (0, 1) if kind == "T7" else (0, 1, 2, 3)
        for m in ms:
            a = max(pv_last[(1, 2*m+1)] + 2, g0 + 7)
            a = min(a, n - 1)
            if kind == "T7":
                fill += tag(epi_fill(m, a, min(a + 24, n - 1), a, n - 1), 201)
            else:
                fill += tag(epi_fill(m, a + 0.01*m, a + 8 + 0.01*m, a if pv_last[(1,2*m+1)] + 2 <= n - 1 else n + 5, 10**9), 201)
    if kind == "T0":
        fill += tag(epi_fill(2, 0, pv_first[(0,4)] - 8, 0, pv_first[(0,4)] - 2), 1)
        fill += tag(epi_fill(3, 8, pv_first[(0,6)] - 8, 0, pv_first[(0,6)] - 2), 1)
        ql = tag(q_loads(QN0), 1)
        for j, q in enumerate(ql):
            fill.append(F(q, pv_first[(0,6)] + j*0.5, 4, after=pv_first[(0,6)]-1, before=pstart[1] + 1))
    o = schedule(mf, free, fill)
    check_scc(o)
    verify_order(o)
    return o

def check_scc(stream):
    last = None
    for i in stream:
        t = i.t
        op = t.split()[0] if t else ""
        if op in ("s_cselect_b32", "s_addc_u32"):
            assert last is not None and last.split()[0] in ("s_and_b32", "s_cmp_lt_u32", "s_cmp_lg_u64", "s_cmp_eq_u32"), (last, t)
        if op.startswith("s_") and op not in ("s_mov_b32", "s_cselect_b32", "s_waitcnt", "s_barrier", "s_nop", "s_mul_i32", "s_setprio"):
            last = t
    seen_mod = False
    for i in stream:
        if i.t.startswith(f"s_add_u32 s{sDM},"): seen_mod = True
        if i.t.startswith("s_add_u32 m0") : assert not seen_mod, "m0 add after sDM update"

def fin(stream, pend, hist):
    st = []
    out, pend = finalize(stream, pending=pend, history=hist)
    return [i for i in out if i.k != "need"], pend

def slow_path():
    L = []
    A_ = L.append
    for b in range(4):
        A_(salu(f"s_add_u32 s{sQS+b}, s80, {b*4096}"))
        A_(salu(f"s_add_u32 s{sOO+b}, s80, {b*4096}"))
    A_(salu(f"s_mov_b32 s{SQH+2}, s81")); A_(salu(f"s_mov_b32 s{SOH+2}, s81"))
    A_(salu(f"s_mov_b32 s{SQL+2}, {QBYTES}"))
    A_(salu(f"s_mov_b32 s{SK+2}, {KBYTES}")); A_(salu(f"s_mov_b32 s{SV+2}, {KBYTES}"))
    L += q_loads(Q0)
    for r in range(128): A_(valu(f"v_mov_b32 v{O0+r}, 0", [], [O0+r]))
    for b in range(4):
        A_(valu(f"v_mov_b32 v{MC+b}, 0xff800000", [], [MC+b]))
        A_(valu(f"v_mov_b32 v{RL+b}, 0", [], [RL+b]))
    A_(salu(f"s_mul_i32 s{sRD}, s{sW}, {SLOT}"))
    A_(valu(f"v_add_u32 v{AK}, s{sRD}, v{AK0}", [AK0], [AK]))
    A_(valu(f"v_add_u32 v{AV}, s{sRD}, v{AV0}", [AV0], [AV]))
    A_(salu(f"s_mov_b32 s{sCNT}, 0"))
    A_(raw("L_slow_stage:", k="label"))
    for j in range(32):
        isv = j >= 16; p = j % 16
        A_(salu(f"s_add_u32 m0, s{sRD}, {p*(PITCH-256) + (HALF if isv else 0)}"))
        A_(salu("s_nop 0"))
        A_(I(f"buffer_load_dwordx4 v{T0+12}, {srd(SV if isv else SK)}, s83 offen offset:{p*256} lds", rd=[T0+12], k="vmem"))
    A_(raw("s_waitcnt vmcnt(0)"))
    for per in range(2):
        for i in range(8):
            L += frag_reads("K", per, i, i % NF)
        for i in range(8):
            L += qk_mfmas(0, i, i % NF, Q0)
        for b in range(4):
            x = Sreg(0,b,0); t = T0; t2 = T0+1; f = T0+2; mcn = T0+3
            L += [
                valu(f"v_max3_f32 v{t}, v{x}, v{x+1}, v{x+2}", [x,x+1,x+2], [t]),
                valu(f"v_max3_f32 v{t}, v{t}, v{x+3}, v{x+4}", [t,x+3,x+4], [t]),
                valu(f"v_max3_f32 v{t}, v{t}, v{x+5}, v{x+6}", [t,x+5,x+6], [t]),
                valu(f"v_max3_f32 v{t}, v{t}, v{x+7}, v{MC+b}", [t,x+7,MC+b], [t]),
                valu(f"v_mov_b32 v{t2}, v{t}", [t], [t2]),
                I(f"v_permlane16_swap_b32 v{t}, v{t2}", rd=[t,t2], wr=[t,t2], k="perm"),
                valu(f"v_max_f32 v{t}, v{t}, v{t2}", [t,t2], [t]),
                valu(f"v_mov_b32 v{t2}, v{t}", [t], [t2]),
                I(f"v_permlane32_swap_b32 v{t}, v{t2}", rd=[t,t2], wr=[t,t2], k="perm"),
                valu(f"v_max_f32 v{t}, v{t}, v{t2}", [t,t2], [t]),
                valu(f"v_sub_f32 v{f}, v{MC+b}, v{t}", [MC+b, t], [f]),
                valu(f"v_mul_f32 v{f}, s{sC}, v{f}", [f], [f]),
                trans(f"v_exp_f32 v{f}, v{f}", [f], [f]),
                valu(f"v_mov_b32 v{MC+b}, v{t}", [t], [MC+b]),
                valu(f"v_mul_f32 v{mcn}, s{sT+3}, v{t}", [t], [mcn]),
                valu(f"v_mul_f32 v{RL+b}, v{RL+b}, v{f}", [RL+b, f], [RL+b]),
            ]
            for r in range(32):
                o = O0 + b*32 + r
                A_(valu(f"v_mul_f32 v{o}, v{o}, v{f}", [o, f], [o]))
            for r in range(8):
                A_(valu(f"v_fma_f32 v{x+r}, v{x+r}, s{sC}, v{mcn}", [x+r, mcn], [x+r]))
            for r in range(8):
                A_(trans(f"v_exp_f32 v{x+r}, v{x+r}", [x+r], [x+r]))
            for r in range(8):
                A_(valu(f"v_add_f32 v{RL+b}, v{RL+b}, v{x+r}", [RL+b, x+r], [RL+b]))
            for r in range(4):
                p = Preg(0,b) + r
                A_(valu(f"v_cvt_pk_bf16_f32 v{p}, v{x+2*r}, v{x+2*r+1}", [x+2*r, x+2*r+1], [p]))
        for i in range(8):
            L += frag_reads("V", per, i, i % NF)
        for i in range(8):
            L += pv_mfmas(0, i, i % NF, False)
    A_(raw("s_waitcnt lgkmcnt(0)", k="waitlgkm0"))
    A_(salu("s_add_u32 s83, s83, 16384"))
    A_(salu(f"s_add_u32 s{sCNT}, s{sCNT}, 1"))
    A_(salu(f"s_cmp_lt_u32 s{sCNT}, 8"))
    A_(raw("s_nop 7")); A_(raw("s_nop 7"))
    A_(raw("s_cbranch_scc1 L_slow_stage"))
    for b in range(4):
        t = RL+b; t2 = T0+1
        L += [valu(f"v_mov_b32 v{t2}, v{t}", [t], [t2]),
              I(f"v_permlane16_swap_b32 v{t}, v{t2}", rd=[t,t2], wr=[t,t2], k="perm"),
              valu(f"v_add_f32 v{t}, v{t}, v{t2}", [t,t2], [t]),
              valu(f"v_mov_b32 v{t2}, v{t}", [t], [t2]),
              I(f"v_permlane32_swap_b32 v{t}, v{t2}", rd=[t,t2], wr=[t,t2], k="perm"),
              valu(f"v_add_f32 v{t}, v{t}, v{t2}", [t,t2], [t]),
              trans(f"v_rcp_f32 v{t}, v{t}", [t], [t])]
    for b in range(4):
        for m in range(4):
            L += epi_ops(b, m)
    return L

def kernel(force_slow=False):
    H = []
    a = lambda t: H.append(t)
    a(f"s_cmp_ge_u32 s2, 256")
    a(f"s_cbranch_scc1 L_end")
    a(f"s_load_dwordx4 s[68:71], s[0:1], 0")
    a(f"s_load_dwordx4 s[72:75], s[0:1], 16")
    a(f"v_lshrrev_b32 v{T0}, 6, v0")
    a(f"v_and_b32 v{T0+1}, 63, v0")
    a(f"v_readfirstlane_b32 s{sW}, v{T0}")
    a(f"s_and_b32 s{sT}, s2, 7")
    a(f"s_lshr_b32 s{sT+1}, s2, 3")
    a(f"s_lshl_b32 s{sT}, s{sT}, 5")
    for r in range(3):
        a(f"s_add_u32 s{sT+2}, s{sT+1}, {32*r}")
        a(f"s_mul_i32 s{sT+3}, s{sT+2}, 171")
        a(f"s_lshr_b32 s{sT+3}, s{sT+3}, 9")
        a(f"s_mul_i32 s62, s{sT+3}, 3")
        a(f"s_sub_u32 s62, s{sT+2}, s62")
        a(f"s_add_u32 s{sT+3}, s{sT+3}, s{sT}")
        a(f"s_lshl_b32 s{sKV+r}, s{sT+3}, 17")
        a(f"s_mul_i32 s{sQO+r}, s{sT+3}, 188416")
        a(f"s_lshl_b32 s63, s62, 2")
        a(f"s_add_u32 s63, s63, s{sW}")
        a(f"s_cmp_eq_u32 s63, 11")
        a(f"s_cselect_b32 s{sHN+r}, 0, {QBYTES}")
        a(f"s_lshl_b32 s63, s63, 14")
        a(f"s_add_u32 s{sQO+r}, s{sQO+r}, s63")
        a(f"s_mov_b32 s{84+r}, s{sKV+r}")
        a(f"s_mov_b32 s{87+r}, s{sQO+r}")
        a(f"s_mov_b32 s{90+r}, s{sHN+r}")
    l = T0+1
    a(f"v_and_b32 v{T0+2}, 15, v{l}")
    a(f"v_lshrrev_b32 v{T0+3}, 4, v{l}")
    a(f"v_lshlrev_b32 v{T0+4}, 12, v{T0+3}")
    a(f"v_lshl_add_u32 v{T0+12}, v{T0+2}, 4, v{T0+4}")
    a(f"v_lshl_add_u32 v{DV}, v{T0}, 10, v{T0+12}")
    a(f"v_lshlrev_b32 v{T0+4}, 8, v{T0+2}")
    a(f"v_lshl_add_u32 v{QV}, v{T0+3}, 4, v{T0+4}")
    a(f"s_mul_i32 s{sW4224}, s{sW}, {4*PITCH}")
    a(f"s_mov_b32 s{sC}, {CSCALE}")
    a(f"s_mov_b32 s{sT+3}, {CSCALE | 0x80000000}")
    a(f"s_mov_b32 s{sTHR}, {THRESH if not force_slow else 0}")
    a(f"s_mov_b32 s{sFLAG}, 0")
    a(f"s_mov_b32 s{sLV}, {QBYTES}")
    a(f"s_mov_b32 s{sSD}, 0")
    a(f"s_mov_b32 s{sKO}, s{sKV}")
    a(f"s_mov_b32 s{sDM}, s{sW4224}")
    for b in range(4):
        a(f"s_add_u32 s{sQS+b}, s{sQO}, {b*4096}")
    a(f"s_waitcnt lgkmcnt(0)")
    for (s, p, nb) in ((SK, 70, KBYTES), (SV, 72, KBYTES), (SQL, 68, QBYTES), (SQH, 68, QBYTES), (SOL, 74, QBYTES), (SOH, 74, QBYTES)):
        a(f"s_mov_b32 s{s}, s{p}")
        a(f"s_mov_b32 s{s+1}, s{p+1}")
        a(f"s_mov_b32 s{s+2}, {nb}")
        a(f"s_mov_b32 s{s+3}, 0x00020000")
    a(f"s_mov_b32 s{SQH+2}, s{sHN}")
    st = [raw(t) for t in H]
    st += dma_now()[:12]
    st += q_loads(Q0)
    for sg in range(1, 4):
        st += dma_advance()
        st.append(salu(f"s_add_u32 s{sDM}, s{sDM}, {SLOT}"))
        st += dma_now()
    H = []
    a(f"v_mul_u32_u24 v{T0+4}, {PITCH}, v{T0+2}")
    a(f"v_lshl_add_u32 v{AK0}, v{T0+3}, 4, v{T0+4}")
    a(f"v_lshrrev_b32 v{T0+4}, 2, v{l}")
    a(f"v_mul_u32_u24 v{T0+4}, {PITCH}, v{T0+4}")
    a(f"v_and_b32 v{T0+5}, 3, v{l}")
    a(f"v_lshl_add_u32 v{T0+4}, v{T0+5}, 3, v{T0+4}")
    a(f"v_add_u32 v{AV0}, {HALF}, v{T0+4}")
    a(f"v_mov_b32 v{AK}, v{AK0}")
    a(f"v_mov_b32 v{AV}, v{AV0}")
    a(f"v_and_b32 v{T0+4}, 1, v{T0+3}")
    a(f"v_lshlrev_b32 v{T0+4}, 5, v{T0+4}")
    a(f"v_lshrrev_b32 v{T0+5}, 1, v{T0+3}")
    a(f"v_lshl_add_u32 v{T0+4}, v{T0+5}, 4, v{T0+4}")
    a(f"v_lshl_add_u32 v{OV}, v{T0+2}, 8, v{T0+4}")
    a(f"s_mov_b32 s{sRD}, 0")
    for r in range(128): a(f"v_mov_b32 v{O0+r}, 0")
    for r in range(16): a(f"v_accvgpr_write_b32 {vr(L0+r)}, 0")
    a(f"v_mov_b32 v{T0+4}, 0x3f803f80")
    for r in range(4): a(f"v_accvgpr_write_b32 {vr(ONES+r)}, v{T0+4}")
    for b in range(4):
        a(f"s_add_u32 s{sQS+b}, s{sQO+1}, {b*4096}")
    a(f"s_mov_b32 s{SQH+2}, s{sHN+1}")
    a(f"s_waitcnt vmcnt(24)")
    a(f"s_barrier")
    st += [raw(t) for t in H]
    GP = [g for g in grp_list() if g[0] == "K"]
    for j in range(D):
        st += frag_reads(*GP[j], j % NF)
    st += q_loads(QN0)
    out, pend = fin(st, [], [])
    text_parts = [text(out)]
    hist = out
    bP, pendP = fin(body("P", vm=32), pend, hist)
    bS0, pendS = fin(body("S"), pendP, bP)
    bS, pendS2 = fin(body("S"), pendS, bS0)
    assert [i.t for i in bS0] == [i.t for i in bS], "S body differs after P vs after S"
    bT7, pend7 = fin(body("T7"), pendS2, bS)
    bT0, pend0 = fin(body("T0"), pend7, bT7)
    bS1, _ = fin(body("S"), pend0, bT0)
    assert [i.t for i in bS1] == [i.t for i in bS], "S body differs after T0"
    bE, pendE = fin(body("E"), pendS2, bS)
    T = text_parts
    T.append(text(bP))
    T.append(f"    s_mov_b32 s{sCNT}, 7\n    s_mov_b32 s{sITEM}, 0")
    T.append("    .p2align 6\nL_S:")
    T.append(text(bS))
    T.append(f"    s_sub_u32 s{sCNT}, s{sCNT}, 1\n    s_cmp_lg_u32 s{sCNT}, 0\n    s_cbranch_scc1 L_S")
    T.append(f"    s_cmp_eq_u32 s{sITEM}, 2\n    s_cbranch_scc1 L_E")
    T.append(text(bT7))
    T.append(text(bT0))
    T.append(f"    s_add_u32 s{sITEM}, s{sITEM}, 1\n    s_mov_b32 s{sCNT}, 6\n    s_branch L_S")
    T.append("L_E:")
    T.append(text(bE))
    T.append(f"    s_cmp_eq_u32 s{sFLAG}, 0\n    s_cbranch_scc1 L_end")
    T.append(f"    s_waitcnt vmcnt(0) lgkmcnt(0)\n    s_barrier\n    s_mov_b32 s{sITEM}, 0")
    T.append("L_slow_item:")
    T.append(f"    s_bitcmp1_b32 s{sFLAG}, 2\n    s_cbranch_scc0 L_slow_next")
    T.append(f"    s_mov_b32 s83, s84\n    s_mov_b32 s80, s87\n    s_mov_b32 s81, s90")
    sp, _ = fin(slow_path(), [], [])
    T.append(text(sp))
    T.append("L_slow_next:")
    T.append(f"    s_lshl_b32 s{sFLAG}, s{sFLAG}, 1\n    s_mov_b32 s84, s85\n    s_mov_b32 s85, s86\n    s_mov_b32 s87, s88\n    s_mov_b32 s88, s89\n    s_mov_b32 s90, s91\n    s_mov_b32 s91, s92")
    T.append(f"    s_add_u32 s{sITEM}, s{sITEM}, 1\n    s_cmp_lt_u32 s{sITEM}, 3\n    s_cbranch_scc1 L_slow_item")
    T.append("L_end:")
    stats = {k: cost(v) for k, v in (("P", bP), ("S", bS), ("T7", bT7), ("T0", bT0), ("E", bE))}
    return "\n".join(T), stats

def cost(stream):
    t = 0; vfree = 0; mfree = 0
    for i in stream:
        if i.k == "mfma":
            t = max(t, vfree, mfree); vfree = t + 8; mfree = t + 16; t += 4
        elif i.k in ("valu", "perm", "ds", "vmem"):
            t = max(t, vfree); t += 4; vfree = t
        elif i.k == "trans":
            t = max(t, vfree); t += 8; vfree = t
        elif i.k == "label": pass
        else:
            t += 4*states(i)
    return t, len(stream)

HEADER = open("standalone__mha_softmax__near_ridge.s.ref").read().split("; Override launch")[0]

def emit(path, **kw):
    bodytxt, stats = kernel(**kw)
    s = HEADER
    s += f"; @launch grid=(256,1,1) block=(256,1,1) lds={LDS_BYTES}\n"
    s += f""".amdgcn_target "amdgcn-amd-amdhsa--gfx950"
.text
.globl {NAME}_kernel
.p2align 8
.type {NAME}_kernel,@function
{NAME}_kernel:
{bodytxt}
    s_endpgm
.section .rodata,"a"
.p2align 6
.amdhsa_kernel {NAME}_kernel
  .amdhsa_next_free_vgpr 512
  .amdhsa_next_free_sgpr 102
  .amdhsa_accum_offset 256
  .amdhsa_group_segment_fixed_size 0
  .amdhsa_kernarg_size 48
  .amdhsa_user_sgpr_count 2
  .amdhsa_user_sgpr_kernarg_segment_ptr 1
  .amdhsa_system_sgpr_workgroup_id_x 1
.end_amdhsa_kernel
"""
    open(path, "w").write(s)
    return stats

if __name__ == "__main__":
    ap = argparse.ArgumentParser()
    ap.add_argument("-o", default=f"cdna_kernels/{NAME}.s")
    ap.add_argument("--force-slow", action="store_true")
    args = ap.parse_args()
    print(emit(args.o, force_slow=args.force_slow))
```

```python
import sys, argparse
from asmlib import *

NAME = "standalone__mha_softmax__near_ridge"
QBYTES = 8*32*736*128*2
KBYTES = 8*32*512*128*2
PITCH = 1056
HALF = 16*PITCH
SLOT = 2*HALF
NSLOT = 4
STG = NSLOT*SLOT
STGW = 5120
LDS_BYTES = STG + 4*STGW
CSCALE = 0x3e0293ee
THRESH = 0x4e800000

O0, S0, P0 = 0, 128, 192
MC, RL = 224, 228
AK0, AK2, AV0, AV2, DV, QV, OV = 232, 233, 234, 235, 236, 237, 238
T0 = 240
SW, SR, QR = 249, 250, 251
A = 256
Q0, QN0, F0, L0, ONES, PARK = A+0, A+64, A+128, A+160, A+176, A+192
NF, D = 8, 6
SK, SV, SQL, SQH, SOL, SOH = 4, 8, 12, 16, 20, 24
sC, sW = 28, 29
sKV = 30
sQO = 33
sHN = 36
sKO, sVO, sNN, sRD, sCNT, sITEM, sFLAG = 40, 41, 42, 44, 45, 46, 47
sT = 48
sOO = 52
sQS = 56
sW4224 = 60
sTHR = 61
sLV = 39
sKV0 = 64
sEX = 68

def srd(n): return f"s[{n}:{n+3}]"
def Sreg(buf, b, u): return S0 + buf*32 + b*8 + u*4
def Preg(buf, b): return P0 + buf*16 + b*4
def Oreg(b, n): return O0 + b*32 + n*4

class F:
    def __init__(s, ins, tgt, cost=4, after=-1, before=10**9):
        s.ins = ins if isinstance(ins, list) else [ins]
        s.tgt = tgt; s.cost = cost; s.after = after; s.before = before

def indep(a, b):
    for x in a.ins:
        for y in b.ins:
            if set(x.wr) & (set(y.rd) | set(y.wr)) or set(y.wr) & set(x.rd): return False
            if x.k in ("ds", "vmem", "salu", "raw") and y.k in ("ds", "vmem", "salu", "raw"): return False
    return True

def schedule(mf, free, fill):
    n = len(mf)
    fill = sorted(fill, key=lambda f: f.tgt)
    total = sum(f.cost for f in fill)
    out = []
    done = 0
    for g in range(n):
        out.append(mf[g])
        out += free.get(g, [])
        want = max(8.0, 0)
        goal = total*(g+1)/n
        used = 0
        while fill:
            must = [f for f in fill if f.before <= g]
            room = max(8 - used, 0)
            behind = (done + 3.99 < goal)
            pick = None
            if room == 0 and not behind and not must: break
            for i, f in enumerate(fill[:6] if not must else fill):
                if f.after > g: continue
                if not must and f.tgt > g + 3.0: break
                if not all(indep(f, h) for h in fill[:i]): continue
                if must:
                    pick = i; break
                if room > 0:
                    if f.cost <= room: pick = i; break
                else:
                    if f.cost <= 4: pick = i; break
            if pick is None:
                if room > 0 and used == 0 or behind:
                    f = fill[0]
                    if f.after <= g and f.tgt <= g + 1.0 and (used == 0 or behind):
                        pick = 0
                if pick is None: break
            f = fill.pop(pick)
            assert f.after <= g <= f.before, (f.ins, g, f.after, f.before)
            out += f.ins
            used += f.cost; done += f.cost
    for f in fill:
        assert f.before >= n, (f.ins, f.before)
        out += f.ins
    return out

def tag(x, ph):
    for e in x:
        for i in (e.ins if isinstance(e, F) else [e]):
            tag.n += 1
            i.meta2 = (ph, tag.n)
    return x
tag.n = 0

def verify_order(stream):
    L = [i for i in stream if getattr(i, "meta2", None) is not None]
    un = [i.t for i in stream if getattr(i, "meta2", None) is None and (i.rd or i.wr) and i.k != "need"]
    assert not un, un[:5]
    for a in range(len(L)):
        x = L[a]; xw = set(x.wr); xr = set(x.rd)
        for b in range(a+1, len(L)):
            y = L[b]
            if y.meta2 < x.meta2:
                if xw & (set(y.rd) | set(y.wr)) or xr & set(y.wr):
                    raise AssertionError(f"order violated: '{x.t}' {x.meta2} scheduled before '{y.t}' {y.meta2}")

STAMP = False
def stamp_ops(reg):
    return [raw("s_memtime s[94:95]"), raw("s_waitcnt lgkmcnt(0)", k="waitall"),
            raw("v_mov_b32 v239, s94"), raw("v_cmp_eq_u32 vcc, s93, v253"), raw("s_nop 1"),
            raw(f"v_cndmask_b32 v{reg}, v{reg}, v239, vcc")]

def need_regs(regs):
    return I("", rd=regs, k="need")

OPT = dict(qsched={0:4, 1:3, 2:3, 3:3, 4:3}, osched={1:2, 2:2, 3:2, 4:2, 5:4, 6:4}, vstep=5)

def grp_list():
    L = []
    for per in range(2):
        for i in range(8):
            L.append(("K", per, i)); L.append(("V", per, i))
    return L

def frag_reads(kind, per, i, fslot, slot):
    f = F0 + 4*fslot
    so = (slot & 1)*SLOT
    if kind == "K":
        u, s = i // 4, i % 4
        return [ds128(f, AK2 if slot >= 2 else AK0, so + (2*per+u)*256 + s*64)]
    off = so + (2*per)*256 + i*32
    av = AV2 if slot >= 2 else AV0
    return [dstr(f, av, off), dstr(f+2, av, off+256)]

def qk_mfmas(per, i, fslot, qbase):
    u, s = i // 4, i % 4
    buf = per
    return [mfma16(Sreg(buf,b,u), F0+4*fslot, qbase + b*16 + s*4, Sreg(buf,b,u) if s else None) for b in range(4)]

def pv_mfmas(per, n, fslot, first):
    buf = per
    return [mfma16(Oreg(b,n), F0+4*fslot, Preg(buf,b), None if first else Oreg(b,n)) for b in range(4)]

def rs_mfmas(per, first):
    return [mfma16(L0+4*b, ONES, Preg(per,b), None if first else L0+4*b) for b in range(4)]

def softmax_fill(per, g0, g1, before):
    buf = 1 - per
    L = []
    step = (g1 - g0 - 4.0) / 32.0
    e = 0
    for u in range(2):
        for b in range(4):
            for r in range(4):
                x = Sreg(buf,b,u) + r
                t = g0 + e*step
                L.append(F(valu(f"v_fma_f32 v{x}, v{x}, s{sC}, v{MC+b}", [x, MC+b], [x]), t, 4, after=int(g0)))
                L.append(F(trans(f"v_exp_f32 v{x}, v{x}", [x], [x]), t + 1.6, 8, after=int(g0)))
                if r & 1:
                    p = Preg(buf,b) + 2*u + r//2
                    L.append(F(valu(f"v_cvt_pk_bf16_f32 v{p}, v{x-1}, v{x}", [x-1, x], [p]), t + 3.4, 4, after=int(g0), before=before))
                e += 1
    return L

def max_ops(x, t, t2, extra=None):
    return [
        valu(f"v_max3_f32 v{t}, v{x}, v{x+1}, v{x+2}", [x,x+1,x+2], [t]),
        valu(f"v_max3_f32 v{t}, v{t}, v{x+3}, v{x+4}", [t,x+3,x+4], [t]),
        valu(f"v_max3_f32 v{t}, v{t}, v{x+5}, v{x+6}", [t,x+5,x+6], [t]),
        valu(f"v_max_f32 v{t}, v{t}, v{x+7}", [t,x+7], [t]) if extra is None else
        valu(f"v_max3_f32 v{t}, v{t}, v{x+7}, v{extra}", [t,x+7,extra], [t]),
        valu(f"v_mov_b32 v{t2}, v{t}", [t], [t2]),
        I(f"v_permlane16_swap_b32 v{t}, v{t2}", rd=[t,t2], wr=[t,t2], k="perm"),
        valu(f"v_max_f32 v{t}, v{t}, v{t2}", [t,t2], [t]),
        valu(f"v_mov_b32 v{t2}, v{t}", [t], [t2]),
        I(f"v_permlane32_swap_b32 v{t}, v{t2}", rd=[t,t2], wr=[t,t2], k="perm"),
        valu(f"v_max_f32 v{t}, v{t}, v{t2}", [t,t2], [t]),
    ]

def max_fill(buf, g0, step):
    L = []
    ops = []
    for b in range(4):
        x = Sreg(buf,b,0); t = T0 + 2*b
        ops.append(max_ops(x, t, t+1) + [valu(f"v_mul_f32 v{MC+b}, s{sT+3}, v{t}", [t], [MC+b])])
    k = 0
    for j in range(len(ops[0])):
        for b in range(4):
            L.append(F(ops[b][j], g0 + k*step, 4, after=int(g0))); k += 1
    return L, g0 + k*step

def kv_dma(sig_rel):
    slot = sig_rel % 4
    seq = []
    for isv in (0, 1):
        st = sig_rel - isv
        if st < 0: continue
        base = sKV + (1 if st >= 8 else 0)
        so = sVO if isv else sKO
        pre0 = [salu(f"s_add_u32 s{so}, s{base}, {(st % 8)*16384}")]
        if st == 8: pre0.append(salu(f"s_mov_b32 s{(SV if isv else SK)+2}, s{sNN}"))
        for i in range(4):
            m0 = salu(f"s_add_u32 m0, s{sW4224}, {slot*SLOT + i*800 + (HALF if isv else 0)}")
            ld = I(f"buffer_load_dwordx4 v{DV}, {srd(SV if isv else SK)}, s{so} offen offset:{i*256} lds",
                   rd=[DV], k="vmem", meta="load")
            seq.append(((pre0 if i == 0 else []) + [m0], ld))
    return seq

def now(seq):
    L = []
    for pre, ins in seq:
        L += pre
        if pre: L.append(salu("s_nop 0"))
        L.append(ins)
    return L

def vm_fill(seq, t0, step, free):
    L = []
    g = int(t0) - 1
    for j, (pre, ins) in enumerate(seq):
        g = max(g + 1, int(t0 + j*step) - len(pre))
        for p in pre:
            while g in free: g += 1
            free[g] = [p]
        L.append(F(ins, g + 0.9, 8, after=g+1 if pre else g, before=g+1))
        g += 1
    return L, g

def q_loads(qbase):
    L = []
    for b in range(4):
        for s in range(4):
            r = qbase + b*16 + s*4
            L.append(I(f"buffer_load_dwordx4 {vr(r,4)}, v{QV}, {srd(SQL if b < 2 else SQH)}, s{sQS+b} offen offset:{s*64}",
                       rd=[QV], wr=R(r,4), k="vmem", meta="load"))
    return L

def epi_ops(b, m):
    r = Oreg(b, 2*m)
    L = [valu(f"v_mul_f32 v{r+i}, v{r+i}, v{RL+b}", [r+i, RL+b], [r+i]) for i in range(8)]
    L += [valu(f"v_cvt_pk_bf16_f32 v{r+i}, v{r+2*i}, v{r+2*i+1}", [r+2*i, r+2*i+1], [r+i]) for i in range(4)]
    L += [I(f"ds_write_b64 v{SW}, v[{r+2*h}:{r+2*h+1}] offset:{b*1280 + h*32}", rd=[SW, r+2*h, r+2*h+1], wr=[("stg", b)], k="dsw") for h in range(2)]
    p = PARK + (b*4 + m)*4
    L += [I(f"ds_read_b128 {vr(p,4)}, v{SR} offset:{b*1280}", rd=[SR, ("stg", b)], wr=R(p,4), k="ds")]
    return L

def o_store(b, m):
    p = PARK + (b*4 + m)*4
    return I(f"buffer_store_dwordx4 {vr(p,4)}, v{OV}, {srd(SOL if b < 2 else SOH)}, s{sOO+b} offen offset:{m*64}",
             rd=R(p,4)+[OV], k="vmem", meta="store")

def icost(i):
    return {"trans": 8, "dsw": 12, "vmem": 8}.get(i.k, 4)

def epi_fill(m, t0, t1, after, before):
    ops = [epi_ops(b, m) for b in range(4)]
    L = []
    n = 4*len(ops[0]); k = 0
    for j in range(len(ops[0])):
        for b in range(4):
            L.append(F(ops[b][j], t0 + (t1-t0)*k/n, icost(ops[b][j]), after=after, before=before)); k += 1
    return L

def l_ops():
    L = []
    for b in range(4):
        L.append(valu(f"v_accvgpr_read_b32 v{RL+b}, {vr(L0+4*b)}", [L0+4*b], [RL+b]))
    L.append(valu(f"v_max3_f32 v{T0+8}, v{RL}, v{RL+1}, v{RL+2}", [RL,RL+1,RL+2], [T0+8]))
    L.append(valu(f"v_max_f32 v{T0+8}, v{T0+8}, v{RL+3}", [T0+8,RL+3], [T0+8]))
    L.append(valu(f"v_cmp_nge_f32 vcc, s{sTHR}, v{T0+8}", [T0+8], ["vcc"]))
    for b in range(4):
        L.append(trans(f"v_rcp_f32 v{RL+b}, v{RL+b}", [RL+b], [RL+b]))
    return L

def flag_ops():
    return [salu("s_cmp_lg_u64 vcc, 0"), salu(f"s_addc_u32 s{sFLAG}, s{sFLAG}, s{sFLAG}")]

def item_advance(last=False):
    L = []
    for b in range(4):
        L.append(salu(f"s_add_u32 s{sOO+b}, s{sQO}, {b*4096}"))
    L.append(salu(f"s_mov_b32 s{SOH+2}, s{sHN}"))
    L.append(salu(f"s_mov_b32 s{SOL+2}, {QBYTES}"))
    if last: return L
    L += [salu(f"s_mov_b32 s{sQO}, s{sQO+1}"), salu(f"s_mov_b32 s{sQO+1}, s{sQO+2}"),
          salu(f"s_mov_b32 s{sHN}, s{sHN+1}"), salu(f"s_mov_b32 s{sHN+1}, s{sHN+2}")]
    for b in range(4):
        L.append(salu(f"s_add_u32 s{sQS+b}, s{sQO+1}, {b*4096}"))
    L.append(salu(f"s_mov_b32 s{SQL+2}, s{sLV}"))
    L.append(salu(f"s_min_u32 s{SQH+2}, s{sHN+1}, s{sLV}"))
    L.append(salu(f"s_min_u32 s{sNN}, s{sNN}, s{sLV}"))
    L.append(salu(f"s_mov_b32 s{sLV}, 0"))
    return L

def kv_shift():
    return [salu(f"s_mov_b32 s{sKV}, s{sKV+1}"), salu(f"s_mov_b32 s{sKV+1}, s{sKV+2}")]

def place_free(ops, g, free):
    for s in ops:
        while g in free: g += 1
        free[g] = s if isinstance(s, list) else [s]
    return g

def body(kind):
    idx = {"P": -1, "B0f": 0, "E": 7}.get(kind)
    if idx is None: idx = int(kind[1])
    slot = (idx + 1) % 4
    has_qk = kind != "E"
    qbase = QN0 if kind == "B7" else Q0
    G = grp_list()
    if kind == "P":
        G = [g for g in G if g[0] == "K"]
    NG = len(G)
    mf = []; gstart = []; gend = []; free = {}; fill = []
    pstart = [0, 0]; rs_end = [0, 0]; pv_first = {}; pv_last = {}; firstP = [None, None]
    for gi, (k, per, i) in enumerate(G):
        fs = gi % NF
        if i == 0 and k == "K": pstart[per] = len(mf)
        gstart.append(len(mf))
        ph = 100*per + 10 + gi + 0.5
        if k == "K":
            if has_qk: mf += tag(qk_mfmas(per, i, fs, qbase), ph)
        else:
            first = (kind in ("B0", "B0f") and per == 0)
            if i == 0:
                firstP[per] = len(mf)
                mf += tag(rs_mfmas(per, first), ph); rs_end[per] = len(mf) - 1
                gstart[-1] = len(mf)
            pv_first[(per, i)] = len(mf)
            mf += tag(pv_mfmas(per, i, fs, first), ph)
            pv_last[(per, i)] = len(mf) - 1
        gend.append(len(mf) - 1)
    n = len(mf)
    for gi, (k, per, i) in enumerate(G):
        if k == "K" and not has_qk: continue
        if gi >= D:
            src = gi - D
            war = gend[gi - NF] if gi >= NF else -1
            rds = tag(frag_reads(k, per, i, gi % NF, slot), 100*per + 10 + gi)
            for q, rd in enumerate(rds):
                fill.append(F(rd, max(gstart[src], 0) + 0.5 + 1.5*q, 4, after=max(war, 0), before=max(gstart[gi] - 6, 0)))
        if gstart[gi] > 0:
            free.setdefault(gstart[gi]-1, []).append(need_regs(R(F0 + 4*(gi % NF), 4)))
    gb = n
    if kind != "E":
        gb = gend[NG - 4]
        for f in fill: f.before = min(f.before, gend[NG - D])
        bar = [raw("s_waitcnt vmcnt(@VM@) lgkmcnt(0)", k="waitall"), raw("s_barrier")]
        if STAMP:
            bar = stamp_ops(254) + bar + stamp_ops(255) + [raw("s_add_u32 s93, s93, 1")]
        free[gb] = bar + free.get(gb, [])
        GN = grp_list()
        t = gb + 0.1
        for j in range(D):
            k, per, i = GN[j]
            war = gend[NG + j - NF]
            for rd in tag(frag_reads(k, per, i, j % NF, (slot + 1) % 4), 301):
                fill.append(F(rd, t, 4, after=max(gb, war), before=n-1)); t += 1.0
        free.setdefault(n-1, []).append(need_regs(R(F0, 4)))
    if kind != "P":
        fill += tag(softmax_fill(0, 0, pstart[1] + 2, before=firstP[1] - 1), 5)
    if kind in ("B7", "P"):
        g0 = pstart[1] + 2
        mx, gm = max_fill(0, g0, 0.35)
        fill += tag(mx, 101)
        fill += tag(softmax_fill(1, gm, n, before=n-1), 105)
    elif kind != "E":
        fill += tag(softmax_fill(1, pstart[1] - 1, n, before=n-1), 105)
    seq = []
    if kind == "P":
        seq = kv_dma(2) + kv_dma(3)
        f, g = vm_fill(seq, 2, 2.5, free)
    elif kind != "E":
        seq = kv_dma(idx + 4)
        q0 = sum(v for k, v in OPT["qsched"].items() if k < idx); nq = OPT["qsched"].get(idx, 0)
        o0 = sum(v for k, v in OPT["osched"].items() if k < idx); no = OPT["osched"].get(idx, 0)
        seq = [([], x) for x in q_loads(QN0)[q0:q0+nq]] + seq + [([], o_store(j // 4, j % 4)) for j in range(o0, o0+no)]
        f, g = vm_fill(seq, 4, OPT["vstep"], free)
    if seq:
        assert g < gb - 2, (g, gb)
        fill += tag(f, 1)
    if kind == "B7":
        for r in range(64):
            fill += tag([F(valu(f"v_accvgpr_mov_b32 {vr(Q0+r)}, {vr(QN0+r)}", [QN0+r], [Q0+r]), 1 + r*(pstart[1]-2)/64.0, 4)], 1)
        place_free(kv_shift(), g + 2, free)
    if kind in ("B7", "E"):
        place_free(item_advance(kind == "E"), 1, free)
        lo = tag(l_ops(), 200)
        g0 = rs_end[1] + 3
        for j, o in enumerate(lo):
            fill.append(F(o, g0 + 0.3*j, icost(o), after=g0, before=g0 + 6))
        place_free([flag_ops()], g0 + 8, free)
        if kind == "B7":
            for m in (0, 1):
                a = max(pv_last[(1, 2*m+1)] + 2, g0 + 7)
                fill += tag(epi_fill(m, a, a + 15.9, a, n - 1), 201 + m)
        else:
            prev = []
            for m in range(4):
                a = max(pv_last[(1, 2*m+1)] + 2, g0 + 7)
                aft = a if a <= n - 1 else n + 5
                e = epi_fill(m, a, a + 7.9, aft, 10**9)
                fill += tag(e, 201 + m)
                for b in range(4):
                    fill += tag([F(o_store(b, m), a + 10 + b*0.9, 8, after=aft)], 201.5 + m)
    if kind == "B0":
        fill += tag(epi_fill(2, 0, 20, 0, pv_first[(0,4)] - 2), 1)
        fill += tag(epi_fill(3, 20.1, 44, 0, pv_first[(0,6)] - 2), 2)
    o = schedule(mf, free, fill)
    check_scc(o)
    verify_order(o)
    return o

def check_scc(stream):
    last = None
    for i in stream:
        t = i.t
        op = t.split()[0] if t else ""
        if op in ("s_cselect_b32", "s_addc_u32"):
            assert last is not None and last.split()[0] in ("s_and_b32", "s_cmp_lt_u32", "s_cmp_lg_u64", "s_cmp_eq_u32"), (last, t)
        if op.startswith("s_") and op not in ("s_mov_b32", "s_cselect_b32", "s_waitcnt", "s_barrier", "s_nop", "s_mul_i32", "s_setprio"):
            last = t
    m0 = None
    for j, i in enumerate(stream):
        if i.t.startswith("s_add_u32 m0"):
            assert m0 is None, "two m0 writes without dma"
            m0 = j
        if i.t.endswith(" lds"):
            assert m0 is not None and sum(states(x) for x in stream[m0+1:j]) >= 1
            m0 = None

def fin(stream, pend, hist):
    out, pend = finalize(stream, pending=pend, history=hist)
    return [i for i in out if i.k != "need"], pend

def vm_info(stream):
    pre = tot = after = 0; seen = False
    for i in stream:
        if "@VM@" in i.t: seen = True
        if i.k == "vmem":
            tot += 1
            if not seen: pre += 1
            after = 0 if i.meta == "load" else after + 1
    return pre, tot, after

def slow_path():
    L = []
    A_ = L.append
    for b in range(4):
        A_(salu(f"s_add_u32 s{sQS+b}, s80, {b*4096}"))
        A_(salu(f"s_add_u32 s{sOO+b}, s80, {b*4096}"))
    A_(salu(f"s_mov_b32 s{SQH+2}, s81")); A_(salu(f"s_mov_b32 s{SOH+2}, s81"))
    A_(salu(f"s_mov_b32 s{SQL+2}, {QBYTES}"))
    A_(salu(f"s_mov_b32 s{SK+2}, {KBYTES}")); A_(salu(f"s_mov_b32 s{SV+2}, {KBYTES}"))
    L += q_loads(Q0)
    for r in range(128): A_(valu(f"v_mov_b32 v{O0+r}, 0", [], [O0+r]))
    for b in range(4):
        A_(valu(f"v_mov_b32 v{MC+b}, 0xff800000", [], [MC+b]))
        A_(valu(f"v_mov_b32 v{RL+b}, 0", [], [RL+b]))
    A_(salu(f"s_mov_b32 s{sCNT}, 0"))
    A_(raw("L_slow_stage:", k="label"))
    for j in range(32):
        isv = j >= 16; p = j % 16
        A_(salu(f"s_add_u32 m0, s{sRD}, {p*(PITCH-256) + (HALF if isv else 0)}"))
        A_(salu("s_nop 0"))
        A_(I(f"buffer_load_dwordx4 v{T0+12}, {srd(SV if isv else SK)}, s83 offen offset:{p*256} lds", rd=[T0+12], k="vmem"))
    A_(raw("s_waitcnt vmcnt(0)"))
    for per in range(2):
        for i in range(8):
            L += frag_reads("K", per, i, i % NF, 2)
        for i in range(8):
            L += qk_mfmas(0, i, i % NF, Q0)
        for b in range(4):
            x = Sreg(0,b,0); t = T0; t2 = T0+1; f = T0+2; mcn = T0+3
            L += max_ops(x, t, t2, extra=MC+b)
            L += [
                valu(f"v_sub_f32 v{f}, v{MC+b}, v{t}", [MC+b, t], [f]),
                valu(f"v_mul_f32 v{f}, s{sC}, v{f}", [f], [f]),
                trans(f"v_exp_f32 v{f}, v{f}", [f], [f]),
                valu(f"v_mov_b32 v{MC+b}, v{t}", [t], [MC+b]),
                valu(f"v_mul_f32 v{mcn}, s{sT+3}, v{t}", [t], [mcn]),
                valu(f"v_mul_f32 v{RL+b}, v{RL+b}, v{f}", [RL+b, f], [RL+b]),
            ]
            for r in range(32):
                o = O0 + b*32 + r
                A_(valu(f"v_mul_f32 v{o}, v{o}, v{f}", [o, f], [o]))
            for r in range(8):
                A_(valu(f"v_fma_f32 v{x+r}, v{x+r}, s{sC}, v{mcn}", [x+r, mcn], [x+r]))
            for r in range(8):
                A_(trans(f"v_exp_f32 v{x+r}, v{x+r}", [x+r], [x+r]))
            for r in range(8):
                A_(valu(f"v_add_f32 v{RL+b}, v{RL+b}, v{x+r}", [RL+b, x+r], [RL+b]))
            for r in range(4):
                p = Preg(0,b) + r
                A_(valu(f"v_cvt_pk_bf16_f32 v{p}, v{x+2*r}, v{x+2*r+1}", [x+2*r, x+2*r+1], [p]))
        for i in range(8):
            L += frag_reads("V", per, i, i % NF, 2)
        for i in range(8):
            L += pv_mfmas(0, i, i % NF, False)
    A_(raw("s_waitcnt lgkmcnt(0)", k="waitlgkm0"))
    A_(salu("s_add_u32 s83, s83, 16384"))
    A_(salu(f"s_add_u32 s{sCNT}, s{sCNT}, 1"))
    A_(salu(f"s_cmp_lt_u32 s{sCNT}, 8"))
    A_(raw("s_nop 7")); A_(raw("s_nop 7"))
    A_(raw("s_cbranch_scc1 L_slow_stage"))
    for b in range(4):
        t = RL+b; t2 = T0+1
        L += [valu(f"v_mov_b32 v{t2}, v{t}", [t], [t2]),
              I(f"v_permlane16_swap_b32 v{t}, v{t2}", rd=[t,t2], wr=[t,t2], k="perm"),
              valu(f"v_add_f32 v{t}, v{t}, v{t2}", [t,t2], [t]),
              valu(f"v_mov_b32 v{t2}, v{t}", [t], [t2]),
              I(f"v_permlane32_swap_b32 v{t}, v{t2}", rd=[t,t2], wr=[t,t2], k="perm"),
              valu(f"v_add_f32 v{t}, v{t}, v{t2}", [t,t2], [t]),
              trans(f"v_rcp_f32 v{t}, v{t}", [t], [t])]
    for b in range(4):
        for m in range(4):
            L += epi_ops(b, m) + [o_store(b, m)]
    A_(raw("s_waitcnt vmcnt(0)"))
    return L

def q0_region(b):
    return (2 + b//2)*SLOT + (b & 1)*HALF

def kernel(force_slow=False):
    H = []
    a = lambda t: H.append(t)
    a(f"s_cmp_ge_u32 s2, 256")
    a(f"s_cbranch_scc1 L_end")
    a(f"s_load_dwordx4 s[68:71], s[0:1], 0")
    a(f"s_load_dwordx4 s[72:75], s[0:1], 16")
    a(f"v_lshrrev_b32 v{T0}, 6, v0")
    a(f"v_and_b32 v{T0+1}, 63, v0")
    a(f"v_readfirstlane_b32 s{sW}, v{T0}")
    if STAMP:
        a("s_load_dwordx2 s[96:97], s[0:1], 40")
        a("s_memrealtime s[98:99]")
        a(f"v_mov_b32 v253, v{T0+1}")
        a("v_mov_b32 v254, 0"); a("v_mov_b32 v255, 0")
        a("s_mov_b32 s93, 0")
        for x in stamp_ops(254): a(x.t)
        a("v_mov_b32 v239, s98"); a("v_cndmask_b32 v255, v255, v239, vcc")
        a("s_mov_b32 s93, 1")
    a(f"s_and_b32 s{sT}, s2, 7")
    a(f"s_lshr_b32 s{sT+1}, s2, 3")
    a(f"s_lshl_b32 s{sT}, s{sT}, 5")
    def item_tab(r):
        a(f"s_add_u32 s{sT+2}, s{sT+1}, {32*r}")
        a(f"s_mul_i32 s63, s{sT+2}, 171")
        a(f"s_lshr_b32 s63, s63, 9")
        a(f"s_mul_i32 s62, s63, 3")
        a(f"s_sub_u32 s62, s{sT+2}, s62")
        a(f"s_add_u32 s63, s63, s{sT}")
        a(f"s_lshl_b32 s{sKV+r}, s63, 17")
        a(f"s_mul_i32 s{sQO+r}, s63, 188416")
        a(f"s_lshl_b32 s62, s62, 2")
        a(f"s_add_u32 s62, s62, s{sW}")
        a(f"s_cmp_eq_u32 s62, 11")
        a(f"s_cselect_b32 s{sHN+r}, 0, {QBYTES}")
        a(f"s_lshl_b32 s62, s62, 14")
        a(f"s_add_u32 s{sQO+r}, s{sQO+r}, s62")
    item_tab(0)
    l = T0+1
    a(f"v_and_b32 v{T0+2}, 15, v{l}")
    a(f"v_lshrrev_b32 v{T0+3}, 4, v{l}")
    a(f"v_lshlrev_b32 v{T0+4}, 12, v{T0+3}")
    a(f"v_lshl_add_u32 v{T0+12}, v{T0+2}, 4, v{T0+4}")
    a(f"v_lshl_add_u32 v{DV}, v{T0}, 10, v{T0+12}")
    a(f"v_lshrrev_b32 v{T0+5}, 2, v{l}")
    a(f"v_and_b32 v{T0+6}, 3, v{l}")
    a(f"v_lshlrev_b32 v{T0+4}, 8, v{T0+5}")
    a(f"v_lshl_add_u32 v{OV}, v{T0+6}, 4, v{T0+4}")
    a(f"s_mul_i32 s{sW4224}, s{sW}, {4*PITCH}")
    for b in range(4):
        a(f"s_add_u32 s{sQS+b}, s{sQO}, {b*4096}")
    for (s, nb) in ((SK, KBYTES), (SV, KBYTES), (SQL, QBYTES), (SQH, f"s{sHN}"), (SOL, 0), (SOH, 0)):
        a(f"s_mov_b32 s{s+2}, {nb}")
        a(f"s_mov_b32 s{s+3}, 0x00020000")
    a(f"s_waitcnt lgkmcnt(0)")
    for (s, p) in ((SK, 70), (SQL, 68), (SQH, 68), (SV, 72), (SOL, 74), (SOH, 74)):
        a(f"s_mov_b32 s{s}, s{p}")
        a(f"s_mov_b32 s{s+1}, s{p+1}")
    st = [raw(t) for t in H]
    st += now(kv_dma(0))
    for b in range(4):
        for s in range(4):
            st.append(salu(f"s_add_u32 m0, s{sW4224}, {q0_region(b) + s*(1024-64)}"))
            st.append(salu("s_nop 0"))
            st.append(I(f"buffer_load_dwordx4 v{OV}, {srd(SQL if b < 2 else SQH)}, s{sQS+b} offen offset:{s*64} lds", rd=[OV], k="vmem"))
    st += now(kv_dma(1))
    H = []
    item_tab(1); item_tab(2)
    for r in range(3):
        a(f"s_mov_b32 s{84+r}, s{sKV+r}")
        a(f"s_mov_b32 s{87+r}, s{sQO+r}")
        a(f"s_mov_b32 s{90+r}, s{sHN+r}")
    a(f"s_mov_b32 s{sC}, {CSCALE}")
    a(f"s_mov_b32 s{sT+3}, {CSCALE | 0x80000000}")
    a(f"s_mov_b32 s{sTHR}, {THRESH if not force_slow else 0}")
    a(f"s_mov_b32 s{sFLAG}, 0")
    a(f"s_mov_b32 s{sLV}, {QBYTES}")
    a(f"s_mov_b32 s{sNN}, {KBYTES}")
    a(f"s_mov_b32 s{sITEM}, 0")
    for b in range(4):
        a(f"s_mov_b32 s{sOO+b}, 0")
    a(f"v_lshlrev_b32 v{T0+4}, 8, v{T0+2}")
    a(f"v_lshl_add_u32 v{QV}, v{T0+3}, 4, v{T0+4}")
    a(f"v_mul_u32_u24 v{T0+4}, {PITCH}, v{T0+2}")
    a(f"v_lshl_add_u32 v{AK0}, v{T0+3}, 4, v{T0+4}")
    a(f"v_add_u32 v{AK2}, {2*SLOT}, v{AK0}")
    a(f"v_mul_u32_u24 v{T0+4}, {PITCH}, v{T0+5}")
    a(f"v_lshl_add_u32 v{T0+4}, v{T0+6}, 3, v{T0+4}")
    a(f"v_add_u32 v{AV0}, {HALF}, v{T0+4}")
    a(f"v_add_u32 v{AV2}, {2*SLOT}, v{AV0}")
    a(f"s_mul_i32 s{sT}, s{sW}, {STGW}")
    a(f"s_add_u32 s{sT}, s{sT}, {STG}")
    a(f"v_mul_u32_u24 v{T0+4}, 80, v{T0+2}")
    a(f"v_lshl_add_u32 v{T0+4}, v{T0+3}, 3, v{T0+4}")
    a(f"v_add_u32 v{SW}, s{sT}, v{T0+4}")
    a(f"v_mul_u32_u24 v{T0+4}, 80, v{T0+5}")
    a(f"v_lshl_add_u32 v{T0+4}, v{T0+6}, 4, v{T0+4}")
    a(f"v_add_u32 v{SR}, s{sT}, v{T0+4}")
    a(f"s_add_u32 s{sT}, s{sW4224}, {2*SLOT}")
    a(f"v_lshlrev_b32 v{T0+4}, 6, v{T0+2}")
    a(f"v_lshl_add_u32 v{T0+4}, v{T0+3}, 4, v{T0+4}")
    a(f"v_add_u32 v{QR}, s{sT}, v{T0+4}")
    a(f"v_mov_b32 v{T0+4}, 0x3f803f80")
    for r in range(4): a(f"v_accvgpr_write_b32 {vr(ONES+r)}, v{T0+4}")
    for b in range(4):
        a(f"s_add_u32 s{sQS+b}, s{sQO+1}, {b*4096}")
    a(f"s_mov_b32 s{SQH+2}, s{sHN+1}")
    if STAMP:
        for x in stamp_ops(254): a(x.t)
    a(f"s_waitcnt vmcnt(24)")
    a(f"s_barrier")
    st += [raw(t) for t in H]
    GP = [g for g in grp_list() if g[0] == "K"]
    for j in range(D):
        st += frag_reads(*GP[j], j % NF, 0)
    for b in range(4):
        st.append(raw(f"s_waitcnt vmcnt({8 + 4*(3-b)})"))
        for s in range(4):
            st.append(ds128(Q0 + b*16 + s*4, QR, q0_region(b) - 2*SLOT + s*1024))
    st.append(raw("s_waitcnt lgkmcnt(0)", k="waitlgkm0"))
    if STAMP:
        st += stamp_ops(255) + [raw("s_add_u32 s93, s93, 1")]
    out, pend = fin(st, [], [])
    T = [text(out)]
    names = ["P", "B0f", "B1", "B2", "B3", "B4", "B5", "B6", "B7", "B0", "E"]
    raws = {k: body(k) for k in names}
    info = {k: vm_info(v) for k, v in raws.items()}
    preds = {"B0f": [("P",)], "B1": [("P", "B0f"), ("B7", "B0")], "B2": [("B0f", "B1"), ("B0", "B1")],
             "B3": [("B1", "B2")], "B4": [("B2", "B3")], "B5": [("B3", "B4")], "B6": [("B4", "B5")],
             "B7": [("B5", "B6")], "B0": [("B6", "B7")]}
    vm = {"P": info["P"][0], "B0f": 8 + info["B0f"][0]}
    for k, ps in preds.items():
        if k == "B0f": continue
        vm[k] = min(info[p2][2] + info[p1][1] + info[k][0] for p2, p1 in ps)
    assert info["P"][0] == info["P"][1] == 16
    for k, v in raws.items():
        for i in v:
            if "@VM@" in i.t:
                assert vm[k] <= 63
                i.t = i.t.replace("@VM@", str(vm[k]))
    fz = {}; pe = {}
    def do(k, pk):
        o, p = fin(raws[k], pe[pk], fz[pk])
        if k in fz: assert [i.t for i in o] == [i.t for i in fz[k]], f"{k} differs after {pk}"
        fz[k] = o; pe[k] = p
    fz["pro"] = out; pe["pro"] = pend
    for k, pk in (("P", "pro"), ("B0f", "P"), ("B1", "B0f"), ("B2", "B1"), ("B3", "B2"), ("B4", "B3"), ("B5", "B4"), ("B6", "B5"),
                  ("B7", "B6"), ("B0", "B7"), ("B1", "B0"), ("E", "B6")):
        do(k, pk)
    T.append(text(fz["P"])); T.append(text(fz["B0f"]))
    T.append("L_B1:")
    for k in ("B1", "B2", "B3", "B4", "B5", "B6"): T.append(text(fz[k]))
    T.append(f"    s_cmp_eq_u32 s{sITEM}, 2\n    s_cbranch_scc1 L_E")
    T.append(text(fz["B7"])); T.append(text(fz["B0"]))
    T.append(f"    s_add_u32 s{sITEM}, s{sITEM}, 1\n    s_branch L_B1")
    T.append("L_E:")
    T.append(text(fz["E"]))
    if STAMP:
        X = [x.t for x in stamp_ops(254)] + ["s_waitcnt vmcnt(0)"] + [x.t for x in stamp_ops(255)]
        X += ["s_add_u32 s93, s93, 1", "s_memrealtime s[98:99]", "s_waitcnt lgkmcnt(0)", "v_mov_b32 v239, s98",
              "v_cmp_eq_u32 vcc, s93, v253", "s_nop 1", "v_cndmask_b32 v255, v255, v239, vcc",
              "s_getreg_b32 s94, hwreg(HW_REG_XCC_ID)", "v_mov_b32 v239, s94", "v_cndmask_b32 v254, v254, v239, vcc",
              "s_mov_b32 s98, 0x10000000", "s_mov_b32 s99, 0x00020000",
              f"s_lshl_b32 s94, s2, 2", f"s_add_u32 s94, s94, s{sW}", "s_lshl_b32 s94, s94, 9",
              "v_lshlrev_b32 v239, 3, v253", "buffer_store_dwordx2 v[254:255], v239, s[96:99], s94 offen"]
        T.append("\n".join("    " + x for x in X))
    T.append(f"    s_cmp_eq_u32 s{sFLAG}, 0\n    s_cbranch_scc1 L_end")
    T.append(f"    s_waitcnt vmcnt(0) lgkmcnt(0)\n    s_barrier\n    s_mov_b32 s{sITEM}, 0")
    T.append(f"    s_mul_i32 s{sRD}, s{sW}, {SLOT}\n    v_add_u32 v{AK2}, s{sRD}, v{AK0}\n    v_add_u32 v{AV2}, s{sRD}, v{AV0}")
    T.append("L_slow_item:")
    T.append(f"    s_bitcmp1_b32 s{sFLAG}, 2\n    s_cbranch_scc0 L_slow_next")
    T.append(f"    s_mov_b32 s83, s84\n    s_mov_b32 s80, s87\n    s_mov_b32 s81, s90")
    sp, _ = fin(slow_path(), [], [])
    T.append(text(sp))
    T.append("L_slow_next:")
    T.append(f"    s_lshl_b32 s{sFLAG}, s{sFLAG}, 1\n    s_mov_b32 s84, s85\n    s_mov_b32 s85, s86\n    s_mov_b32 s87, s88\n    s_mov_b32 s88, s89\n    s_mov_b32 s90, s91\n    s_mov_b32 s91, s92")
    T.append(f"    s_add_u32 s{sITEM}, s{sITEM}, 1\n    s_cmp_lt_u32 s{sITEM}, 3\n    s_cbranch_scc1 L_slow_item")
    T.append("L_end:")
    stats = {k: cost(fz[k]) for k in names}
    tot = stats["P"][0] + stats["B0f"][0] + 3*sum(stats[f"B{i}"][0] for i in range(1, 7)) + 2*(stats["B7"][0] + stats["B0"][0]) + stats["E"][0]
    return "\n".join(T), (stats, vm, tot)

def cost(stream):
    t = 0; vfree = 0; mfree = 0
    for i in stream:
        if i.k == "mfma":
            t = max(t, vfree, mfree); vfree = t + 8; mfree = t + 16; t += 4
        elif i.k in ("valu", "perm", "ds", "vmem", "trans", "dsw"):
            t = max(t, vfree); t += icost(i); vfree = t
        elif i.k == "label": pass
        else:
            t += 4*states(i)
    return t, len(stream)

HEADER = open("standalone__mha_softmax__near_ridge.s.ref").read().split("; Override launch")[0]

def emit(path, **kw):
    bodytxt, stats = kernel(**kw)
    s = HEADER
    s += f"; @launch grid=(256,1,1) block=(256,1,1) lds={LDS_BYTES}\n"
    s += f""".amdgcn_target "amdgcn-amd-amdhsa--gfx950"
.text
.globl {NAME}_kernel
.p2align 8
.type {NAME}_kernel,@function
{NAME}_kernel:
{bodytxt}
    s_endpgm
.section .rodata,"a"
.p2align 6
.amdhsa_kernel {NAME}_kernel
  .amdhsa_next_free_vgpr 512
  .amdhsa_next_free_sgpr 102
  .amdhsa_accum_offset 256
  .amdhsa_group_segment_fixed_size 0
  .amdhsa_kernarg_size 48
  .amdhsa_user_sgpr_count 2
  .amdhsa_user_sgpr_kernarg_segment_ptr 1
  .amdhsa_system_sgpr_workgroup_id_x 1
.end_amdhsa_kernel
"""
    open(path, "w").write(s)
    return stats

if __name__ == "__main__":
    ap = argparse.ArgumentParser()
    ap.add_argument("-o", default=f"cdna_kernels/{NAME}.s")
    ap.add_argument("--force-slow", action="store_true")
    ap.add_argument("--stamp", action="store_true")
    args = ap.parse_args()
    STAMP = args.stamp
    print(emit(args.o, force_slow=args.force_slow))
```

```python
import sys, argparse
from asmlib import *

NAME = "standalone__mha_softmax__near_ridge"
QBYTES = 8*32*736*128*2
KBYTES = 8*32*512*128*2
PITCH = 1056
HALF = 16*PITCH
SLOT = 2*HALF
NSLOT = 4
STG = NSLOT*SLOT
STGW = 5120
LDS_BYTES = STG + 4*STGW
CSCALE = 0x3e0293ee
THRESH = 0x4e800000

O0, S0, P0 = 0, 128, 192
MC, RL = 224, 228
AK0, AK2, AV0, AV2, DV, QV, OV = 232, 233, 234, 235, 236, 237, 238
T0 = 240
SW, SR, QR = 249, 250, 251
A = 256
Q0, QN0, F0, L0, ONES, PARK = A+0, A+64, A+128, A+160, A+176, A+192
NF, D = 8, 6
SK, SV, SQL, SQH, SOL, SOH = 4, 8, 12, 16, 20, 24
sC, sW = 28, 29
sKV = 30
sQO = 33
sHN = 36
sKO, sVO, sNN, sRD, sCNT, sITEM, sFLAG = 40, 41, 42, 44, 45, 46, 47
sT = 48
sOO = 52
sQS = 56
sW4224 = 60
sTHR = 61
sLV = 39
sKV0 = 64
sEX = 68

def srd(n): return f"s[{n}:{n+3}]"
def Sreg(buf, b, u): return S0 + buf*32 + b*8 + u*4
def Preg(buf, b): return P0 + buf*16 + b*4
def Oreg(b, n): return O0 + b*32 + n*4

class F:
    def __init__(s, ins, tgt, cost=4, after=-1, before=10**9):
        s.ins = ins if isinstance(ins, list) else [ins]
        s.tgt = tgt; s.cost = cost; s.after = after; s.before = before

def indep(a, b):
    for x in a.ins:
        for y in b.ins:
            if set(x.wr) & (set(y.rd) | set(y.wr)) or set(y.wr) & set(x.rd): return False
            if x.k in ("ds", "vmem", "salu", "raw") and y.k in ("ds", "vmem", "salu", "raw"): return False
    return True

def schedule(mf, free, fill):
    n = len(mf)
    fill = sorted(fill, key=lambda f: f.tgt)
    total = sum(f.cost for f in fill)
    out = []
    done = 0
    for g in range(n):
        out.append(mf[g])
        out += free.get(g, [])
        want = max(8.0, 0)
        goal = total*(g+1)/n
        used = 0
        while fill:
            must = [f for f in fill if f.before <= g]
            room = max(8 - used, 0)
            behind = (done + 3.99 < goal)
            pick = None
            if room == 0 and not behind and not must: break
            for i, f in enumerate(fill[:6] if not must else fill):
                if f.after > g: continue
                if not must and f.tgt > g + 3.0: break
                if not all(indep(f, h) for h in fill[:i]): continue
                if must:
                    pick = i; break
                if room > 0:
                    if f.cost <= room: pick = i; break
                else:
                    if f.cost <= 4: pick = i; break
            if pick is None:
                if room > 0 and used == 0 or behind:
                    f = fill[0]
                    if f.after <= g and f.tgt <= g + 1.0 and (used == 0 or behind):
                        pick = 0
                if pick is None: break
            f = fill.pop(pick)
            assert f.after <= g <= f.before, (f.ins, g, f.after, f.before)
            out += f.ins
            used += f.cost; done += f.cost
    for f in fill:
        assert f.before >= n, (f.ins, f.before)
        out += f.ins
    return out

def tag(x, ph):
    for e in x:
        for i in (e.ins if isinstance(e, F) else [e]):
            tag.n += 1
            i.meta2 = (ph, tag.n)
    return x
tag.n = 0

def verify_order(stream):
    L = [i for i in stream if getattr(i, "meta2", None) is not None]
    un = [i.t for i in stream if getattr(i, "meta2", None) is None and (i.rd or i.wr) and i.k != "need"]
    assert not un, un[:5]
    for a in range(len(L)):
        x = L[a]; xw = set(x.wr); xr = set(x.rd)
        for b in range(a+1, len(L)):
            y = L[b]
            if y.meta2 < x.meta2:
                if xw & (set(y.rd) | set(y.wr)) or xr & set(y.wr):
                    raise AssertionError(f"order violated: '{x.t}' {x.meta2} scheduled before '{y.t}' {y.meta2}")

STAMP = False
def stamp_ops(reg):
    return [raw("s_memtime s[94:95]"), raw("s_waitcnt lgkmcnt(0)", k="waitall"),
            raw("v_mov_b32 v239, s94"), raw("v_cmp_eq_u32 vcc, s93, v253"), raw("s_nop 1"),
            raw(f"v_cndmask_b32 v{reg}, v{reg}, v239, vcc")]

def need_regs(regs):
    return I("", rd=regs, k="need")

OPT = dict(qsched={0:4, 1:3, 2:3, 3:3, 4:3}, osched={1:2, 2:2, 3:2, 4:2, 5:4, 6:4}, vstep=5)

def grp_list():
    L = []
    for per in range(2):
        for i in range(8):
            L.append(("K", per, i)); L.append(("V", per, i))
    return L

def frag_reads(kind, per, i, fslot, slot):
    f = F0 + 4*fslot
    so = (slot & 1)*SLOT
    if kind == "K":
        u, s = i // 4, i % 4
        return [ds128(f, AK2 if slot >= 2 else AK0, so + (2*per+u)*256 + s*64)]
    off = so + (2*per)*256 + i*32
    av = AV2 if slot >= 2 else AV0
    return [dstr(f, av, off), dstr(f+2, av, off+256)]

def qk_mfmas(per, i, fslot, qbase):
    u, s = i // 4, i % 4
    buf = per
    return [mfma16(Sreg(buf,b,u), F0+4*fslot, qbase + b*16 + s*4, Sreg(buf,b,u) if s else None) for b in range(4)]

def pv_mfmas(per, n, fslot, first):
    buf = per
    return [mfma16(Oreg(b,n), F0+4*fslot, Preg(buf,b), None if first else Oreg(b,n)) for b in range(4)]

def rs_mfmas(per, first):
    return [mfma16(L0+4*b, ONES, Preg(per,b), None if first else L0+4*b) for b in range(4)]

def softmax_fill(per, g0, g1, before):
    buf = 1 - per
    L = []
    step = (g1 - g0 - 4.0) / 32.0
    e = 0
    for u in range(2):
        for b in range(4):
            for r in range(4):
                x = Sreg(buf,b,u) + r
                t = g0 + e*step
                L.append(F(valu(f"v_fma_f32 v{x}, v{x}, s{sC}, v{MC+b}", [x, MC+b], [x]), t, 4, after=int(g0)))
                L.append(F(trans(f"v_exp_f32 v{x}, v{x}", [x], [x]), t + 1.6, 8, after=int(g0)))
                if r & 1:
                    p = Preg(buf,b) + 2*u + r//2
                    L.append(F(valu(f"v_cvt_pk_bf16_f32 v{p}, v{x-1}, v{x}", [x-1, x], [p]), t + 3.4, 4, after=int(g0), before=before))
                e += 1
    return L

def max_ops(x, t, t2, extra=None):
    return [
        valu(f"v_max3_f32 v{t}, v{x}, v{x+1}, v{x+2}", [x,x+1,x+2], [t]),
        valu(f"v_max3_f32 v{t}, v{t}, v{x+3}, v{x+4}", [t,x+3,x+4], [t]),
        valu(f"v_max3_f32 v{t}, v{t}, v{x+5}, v{x+6}", [t,x+5,x+6], [t]),
        valu(f"v_max_f32 v{t}, v{t}, v{x+7}", [t,x+7], [t]) if extra is None else
        valu(f"v_max3_f32 v{t}, v{t}, v{x+7}, v{extra}", [t,x+7,extra], [t]),
        valu(f"v_mov_b32 v{t2}, v{t}", [t], [t2]),
        I(f"v_permlane16_swap_b32 v{t}, v{t2}", rd=[t,t2], wr=[t,t2], k="perm"),
        valu(f"v_max_f32 v{t}, v{t}, v{t2}", [t,t2], [t]),
        valu(f"v_mov_b32 v{t2}, v{t}", [t], [t2]),
        I(f"v_permlane32_swap_b32 v{t}, v{t2}", rd=[t,t2], wr=[t,t2], k="perm"),
        valu(f"v_max_f32 v{t}, v{t}, v{t2}", [t,t2], [t]),
    ]

def max_fill(buf, g0, step):
    L = []
    ops = []
    for b in range(4):
        x = Sreg(buf,b,0); t = T0 + 2*b
        ops.append(max_ops(x, t, t+1) + [valu(f"v_mul_f32 v{MC+b}, s{sT+3}, v{t}", [t], [MC+b])])
    k = 0
    for j in range(len(ops[0])):
        for b in range(4):
            L.append(F(ops[b][j], g0 + k*step, 4, after=int(g0))); k += 1
    return L, g0 + k*step

def kv_dma(sig_rel):
    slot = sig_rel % 4
    seq = []
    for isv in (0, 1):
        st = sig_rel - isv
        if st < 0: continue
        base = sKV + (1 if st >= 8 else 0)
        so = sVO if isv else sKO
        pre0 = [salu(f"s_add_u32 s{so}, s{base}, {(st % 8)*16384}")]
        if st == 8: pre0.append(salu(f"s_mov_b32 s{(SV if isv else SK)+2}, s{sNN}"))
        for i in range(4):
            m0 = salu(f"s_add_u32 m0, s{sW4224}, {slot*SLOT + i*800 + (HALF if isv else 0)}")
            ld = I(f"buffer_load_dwordx4 v{DV}, {srd(SV if isv else SK)}, s{so} offen offset:{i*256} lds",
                   rd=[DV], k="vmem", meta="load")
            seq.append(((pre0 if i == 0 else []) + [m0], ld))
    return seq

def now(seq):
    L = []
    for pre, ins in seq:
        L += pre
        if pre: L.append(salu("s_nop 0"))
        L.append(ins)
    return L

def vm_fill(seq, t0, step, free):
    L = []
    g = int(t0) - 1
    for j, (pre, ins) in enumerate(seq):
        g = max(g + 1, int(t0 + j*step) - len(pre))
        for p in pre:
            while g in free: g += 1
            free[g] = [p]
        L.append(F(ins, g + 0.9, 8, after=g+1 if pre else g, before=g+1))
        g += 1
    return L, g

def q_loads(qbase):
    L = []
    for b in range(4):
        for s in range(4):
            r = qbase + b*16 + s*4
            L.append(I(f"buffer_load_dwordx4 {vr(r,4)}, v{QV}, {srd(SQL if b < 2 else SQH)}, s{sQS+b} offen offset:{s*64}",
                       rd=[QV], wr=R(r,4), k="vmem", meta="load"))
    return L

def epi_ops(b, m):
    r = Oreg(b, 2*m)
    L = [valu(f"v_mul_f32 v{r+i}, v{r+i}, v{RL+b}", [r+i, RL+b], [r+i]) for i in range(8)]
    L += [valu(f"v_cvt_pk_bf16_f32 v{r+i}, v{r+2*i}, v{r+2*i+1}", [r+2*i, r+2*i+1], [r+i]) for i in range(4)]
    L += [I(f"ds_write_b64 v{SW}, v[{r+2*h}:{r+2*h+1}] offset:{b*1280 + h*32}", rd=[SW, r+2*h, r+2*h+1], wr=[("stg", b)], k="dsw") for h in range(2)]
    p = PARK + (b*4 + m)*4
    L += [I(f"ds_read_b128 {vr(p,4)}, v{SR} offset:{b*1280}", rd=[SR, ("stg", b)], wr=R(p,4), k="ds")]
    return L

def o_store(b, m):
    p = PARK + (b*4 + m)*4
    return I(f"buffer_store_dwordx4 {vr(p,4)}, v{OV}, {srd(SOL if b < 2 else SOH)}, s{sOO+b} offen offset:{m*64}",
             rd=R(p,4)+[OV], k="vmem", meta="store")

def icost(i):
    return {"trans": 8, "dsw": 12, "vmem": 8}.get(i.k, 4)

def epi_fill(m, t0, t1, after, before):
    ops = [epi_ops(b, m) for b in range(4)]
    L = []
    n = 4*len(ops[0]); k = 0
    for j in range(len(ops[0])):
        for b in range(4):
            L.append(F(ops[b][j], t0 + (t1-t0)*k/n, icost(ops[b][j]), after=after, before=before)); k += 1
    return L

def l_ops():
    L = []
    for b in range(4):
        L.append(valu(f"v_accvgpr_read_b32 v{RL+b}, {vr(L0+4*b)}", [L0+4*b], [RL+b]))
    L.append(valu(f"v_max3_f32 v{T0+8}, v{RL}, v{RL+1}, v{RL+2}", [RL,RL+1,RL+2], [T0+8]))
    L.append(valu(f"v_max_f32 v{T0+8}, v{T0+8}, v{RL+3}", [T0+8,RL+3], [T0+8]))
    L.append(valu(f"v_cmp_nge_f32 vcc, s{sTHR}, v{T0+8}", [T0+8], ["vcc"]))
    for b in range(4):
        L.append(trans(f"v_rcp_f32 v{RL+b}, v{RL+b}", [RL+b], [RL+b]))
    return L

def flag_ops():
    return [salu("s_cmp_lg_u64 vcc, 0"), salu(f"s_addc_u32 s{sFLAG}, s{sFLAG}, s{sFLAG}")]

def item_advance(last=False):
    L = []
    for b in range(4):
        L.append(salu(f"s_add_u32 s{sOO+b}, s{sQO}, {b*4096}"))
    L.append(salu(f"s_mov_b32 s{SOH+2}, s{sHN}"))
    L.append(salu(f"s_mov_b32 s{SOL+2}, {QBYTES}"))
    if last: return L
    L += [salu(f"s_mov_b32 s{sQO}, s{sQO+1}"), salu(f"s_mov_b32 s{sQO+1}, s{sQO+2}"),
          salu(f"s_mov_b32 s{sHN}, s{sHN+1}"), salu(f"s_mov_b32 s{sHN+1}, s{sHN+2}")]
    for b in range(4):
        L.append(salu(f"s_add_u32 s{sQS+b}, s{sQO+1}, {b*4096}"))
    L.append(salu(f"s_mov_b32 s{SQL+2}, s{sLV}"))
    L.append(salu(f"s_min_u32 s{SQH+2}, s{sHN+1}, s{sLV}"))
    L.append(salu(f"s_min_u32 s{sNN}, s{sNN}, s{sLV}"))
    L.append(salu(f"s_mov_b32 s{sLV}, 0"))
    return L

def kv_shift():
    return [salu(f"s_mov_b32 s{sKV}, s{sKV+1}"), salu(f"s_mov_b32 s{sKV+1}, s{sKV+2}")]

def place_free(ops, g, free):
    for s in ops:
        while g in free: g += 1
        free[g] = s if isinstance(s, list) else [s]
    return g

def body(kind):
    idx = {"P": -1, "B0f": 0, "E": 7}.get(kind)
    if idx is None: idx = int(kind[1])
    slot = (idx + 1) % 4
    has_qk = kind != "E"
    qbase = QN0 if kind == "B7" else Q0
    G = grp_list()
    if kind == "P":
        G = [g for g in G if g[0] == "K"]
    NG = len(G)
    mf = []; gstart = []; gend = []; free = {}; fill = []
    pstart = [0, 0]; rs_end = [0, 0]; pv_first = {}; pv_last = {}; firstP = [None, None]
    for gi, (k, per, i) in enumerate(G):
        fs = gi % NF
        if i == 0 and k == "K": pstart[per] = len(mf)
        gstart.append(len(mf))
        ph = 100*per + 10 + gi + 0.5
        if k == "K":
            if has_qk: mf += tag(qk_mfmas(per, i, fs, qbase), ph)
        else:
            first = (kind in ("B0", "B0f") and per == 0)
            if i == 0:
                firstP[per] = len(mf)
                mf += tag(rs_mfmas(per, first), ph); rs_end[per] = len(mf) - 1
                gstart[-1] = len(mf)
            pv_first[(per, i)] = len(mf)
            mf += tag(pv_mfmas(per, i, fs, first), ph)
            pv_last[(per, i)] = len(mf) - 1
        gend.append(len(mf) - 1)
    n = len(mf)
    for gi, (k, per, i) in enumerate(G):
        if k == "K" and not has_qk: continue
        if gi >= D:
            src = gi - D
            war = gend[gi - NF] if gi >= NF else -1
            rds = tag(frag_reads(k, per, i, gi % NF, slot), 100*per + 10 + gi)
            for q, rd in enumerate(rds):
                fill.append(F(rd, max(gstart[src], 0) + 0.5 + 1.5*q, 4, after=max(war, 0), before=max(gstart[gi] - 6, 0)))
        if gstart[gi] > 0:
            free.setdefault(gstart[gi]-1, []).append(need_regs(R(F0 + 4*(gi % NF), 4)))
    gb = n
    if kind != "E":
        gb = gend[NG - 4]
        for f in fill: f.before = min(f.before, gend[NG - D])
        bar = [raw("s_waitcnt vmcnt(@VM@) lgkmcnt(0)", k="waitall"), raw("s_barrier")]
        if STAMP:
            if STAMP == 2:
                bar = [raw("s_memtime s[94:95]"), raw("s_memrealtime s[98:99]")] + bar + [raw(x) for x in (
                    "v_mov_b32 v239, s94", "v_cmp_eq_u32 vcc, s93, v253", "s_add_u32 s93, s93, 1", "s_nop 0",
                    "v_cndmask_b32 v254, v254, v239, vcc", "v_mov_b32 v239, s98", "v_cndmask_b32 v255, v255, v239, vcc")]
            else:
                bar = stamp_ops(254) + bar + stamp_ops(255) + [raw("s_add_u32 s93, s93, 1")]
        free[gb] = bar + free.get(gb, [])
        GN = grp_list()
        t = gb + 0.1
        for j in range(D):
            k, per, i = GN[j]
            war = gend[NG + j - NF]
            for rd in tag(frag_reads(k, per, i, j % NF, (slot + 1) % 4), 301):
                fill.append(F(rd, t, 4, after=max(gb, war), before=n-1)); t += 1.0
        free.setdefault(n-1, []).append(need_regs(R(F0, 4)))
    if kind != "P":
        fill += tag(softmax_fill(0, 0, pstart[1] + 2, before=firstP[1] - 1), 5)
    if kind in ("B7", "P"):
        g0 = pstart[1] + 2
        mx, gm = max_fill(0, g0, 0.35)
        fill += tag(mx, 101)
        fill += tag(softmax_fill(1, gm, n, before=n-1), 105)
    elif kind != "E":
        fill += tag(softmax_fill(1, pstart[1] - 1, n, before=n-1), 105)
    seq = []
    if kind == "P":
        seq = kv_dma(2) + kv_dma(3)
        f, g = vm_fill(seq, 2, 2.5, free)
    elif kind != "E":
        seq = kv_dma(idx + 4)
        q0 = sum(v for k, v in OPT["qsched"].items() if k < idx); nq = OPT["qsched"].get(idx, 0)
        o0 = sum(v for k, v in OPT["osched"].items() if k < idx); no = OPT["osched"].get(idx, 0)
        seq = [([], x) for x in q_loads(QN0)[q0:q0+nq]] + seq + [([], o_store(j // 4, j % 4)) for j in range(o0, o0+no)]
        f, g = vm_fill(seq, 4, OPT["vstep"], free)
    if seq:
        assert g < gb - 2, (g, gb)
        fill += tag(f, 1)
    if kind == "B7":
        for r in range(64):
            fill += tag([F(valu(f"v_accvgpr_mov_b32 {vr(Q0+r)}, {vr(QN0+r)}", [QN0+r], [Q0+r]), 1 + r*(pstart[1]-2)/64.0, 4)], 1)
        place_free(kv_shift(), g + 2, free)
    if kind in ("B7", "E"):
        place_free(item_advance(kind == "E"), 1, free)
        lo = tag(l_ops(), 200)
        g0 = rs_end[1] + 3
        for j, o in enumerate(lo):
            fill.append(F(o, g0 + 0.3*j, icost(o), after=g0, before=g0 + 6))
        place_free([flag_ops()], g0 + 8, free)
        if kind == "B7":
            for m in (0, 1):
                a = max(pv_last[(1, 2*m+1)] + 2, g0 + 7)
                fill += tag(epi_fill(m, a, a + 15.9, a, n - 1), 201 + m)
        else:
            prev = []
            for m in range(4):
                a = max(pv_last[(1, 2*m+1)] + 2, g0 + 7)
                aft = a if a <= n - 1 else n + 5
                e = epi_fill(m, a, a + 7.9, aft, 10**9)
                fill += tag(e, 201 + m)
                for b in range(4):
                    fill += tag([F(o_store(b, m), a + 10 + b*0.9, 8, after=aft)], 201.5 + m)
    if kind == "B0":
        fill += tag(epi_fill(2, 0, 20, 0, pv_first[(0,4)] - 2), 1)
        fill += tag(epi_fill(3, 20.1, 44, 0, pv_first[(0,6)] - 2), 2)
    if OPT.get("novmem"):
        fill = [f for f in fill if f.ins[0].k != "vmem"]
        for g in free: free[g] = [x for x in free[g] if not x.t.startswith("s_add_u32 m0")]
    if OPT.get("nolds"):
        fill = [f for f in fill if f.ins[0].k != "ds"]
    if OPT.get("nosm"):
        fill = [f for f in fill if not f.ins[0].t.startswith(("v_fma", "v_exp", "v_cvt"))]
    if OPT.get("nobar"):
        for g in free: free[g] = [x for x in free[g] if x.t != "s_barrier"]
    o = schedule(mf, free, fill)
    check_scc(o)
    verify_order(o)
    return o

def check_scc(stream):
    last = None
    for i in stream:
        t = i.t
        op = t.split()[0] if t else ""
        if op in ("s_cselect_b32", "s_addc_u32"):
            assert last is not None and last.split()[0] in ("s_and_b32", "s_cmp_lt_u32", "s_cmp_lg_u64", "s_cmp_eq_u32"), (last, t)
        if op.startswith("s_") and op not in ("s_mov_b32", "s_cselect_b32", "s_waitcnt", "s_barrier", "s_nop", "s_mul_i32", "s_setprio"):
            last = t
    m0 = None
    for j, i in enumerate(stream):
        if i.t.startswith("s_add_u32 m0"):
            assert m0 is None, "two m0 writes without dma"
            m0 = j
        if i.t.endswith(" lds"):
            assert m0 is not None and sum(states(x) for x in stream[m0+1:j]) >= 1
            m0 = None

def fin(stream, pend, hist):
    out, pend = finalize(stream, pending=pend, history=hist)
    return [i for i in out if i.k != "need"], pend

def vm_info(stream):
    pre = tot = after = 0; seen = False
    for i in stream:
        if "@VM@" in i.t: seen = True
        if i.k == "vmem":
            tot += 1
            if not seen: pre += 1
            after = 0 if i.meta == "load" else after + 1
    return pre, tot, after

def slow_path():
    L = []
    A_ = L.append
    for b in range(4):
        A_(salu(f"s_add_u32 s{sQS+b}, s80, {b*4096}"))
        A_(salu(f"s_add_u32 s{sOO+b}, s80, {b*4096}"))
    A_(salu(f"s_mov_b32 s{SQH+2}, s81")); A_(salu(f"s_mov_b32 s{SOH+2}, s81"))
    A_(salu(f"s_mov_b32 s{SQL+2}, {QBYTES}"))
    A_(salu(f"s_mov_b32 s{SK+2}, {KBYTES}")); A_(salu(f"s_mov_b32 s{SV+2}, {KBYTES}"))
    L += q_loads(Q0)
    for r in range(128): A_(valu(f"v_mov_b32 v{O0+r}, 0", [], [O0+r]))
    for b in range(4):
        A_(valu(f"v_mov_b32 v{MC+b}, 0xff800000", [], [MC+b]))
        A_(valu(f"v_mov_b32 v{RL+b}, 0", [], [RL+b]))
    A_(salu(f"s_mov_b32 s{sCNT}, 0"))
    A_(raw("L_slow_stage:", k="label"))
    for j in range(32):
        isv = j >= 16; p = j % 16
        A_(salu(f"s_add_u32 m0, s{sRD}, {p*(PITCH-256) + (HALF if isv else 0)}"))
        A_(salu("s_nop 0"))
        A_(I(f"buffer_load_dwordx4 v{T0+12}, {srd(SV if isv else SK)}, s83 offen offset:{p*256} lds", rd=[T0+12], k="vmem"))
    A_(raw("s_waitcnt vmcnt(0)"))
    for per in range(2):
        for i in range(8):
            L += frag_reads("K", per, i, i % NF, 2)
        for i in range(8):
            L += qk_mfmas(0, i, i % NF, Q0)
        for b in range(4):
            x = Sreg(0,b,0); t = T0; t2 = T0+1; f = T0+2; mcn = T0+3
            L += max_ops(x, t, t2, extra=MC+b)
            L += [
                valu(f"v_sub_f32 v{f}, v{MC+b}, v{t}", [MC+b, t], [f]),
                valu(f"v_mul_f32 v{f}, s{sC}, v{f}", [f], [f]),
                trans(f"v_exp_f32 v{f}, v{f}", [f], [f]),
                valu(f"v_mov_b32 v{MC+b}, v{t}", [t], [MC+b]),
                valu(f"v_mul_f32 v{mcn}, s{sT+3}, v{t}", [t], [mcn]),
                valu(f"v_mul_f32 v{RL+b}, v{RL+b}, v{f}", [RL+b, f], [RL+b]),
            ]
            for r in range(32):
                o = O0 + b*32 + r
                A_(valu(f"v_mul_f32 v{o}, v{o}, v{f}", [o, f], [o]))
            for r in range(8):
                A_(valu(f"v_fma_f32 v{x+r}, v{x+r}, s{sC}, v{mcn}", [x+r, mcn], [x+r]))
            for r in range(8):
                A_(trans(f"v_exp_f32 v{x+r}, v{x+r}", [x+r], [x+r]))
            for r in range(8):
                A_(valu(f"v_add_f32 v{RL+b}, v{RL+b}, v{x+r}", [RL+b, x+r], [RL+b]))
            for r in range(4):
                p = Preg(0,b) + r
                A_(valu(f"v_cvt_pk_bf16_f32 v{p}, v{x+2*r}, v{x+2*r+1}", [x+2*r, x+2*r+1], [p]))
        for i in range(8):
            L += frag_reads("V", per, i, i % NF, 2)
        for i in range(8):
            L += pv_mfmas(0, i, i % NF, False)
    A_(raw("s_waitcnt lgkmcnt(0)", k="waitlgkm0"))
    A_(salu("s_add_u32 s83, s83, 16384"))
    A_(salu(f"s_add_u32 s{sCNT}, s{sCNT}, 1"))
    A_(salu(f"s_cmp_lt_u32 s{sCNT}, 8"))
    A_(raw("s_nop 7")); A_(raw("s_nop 7"))
    A_(raw("s_cbranch_scc1 L_slow_stage"))
    for b in range(4):
        t = RL+b; t2 = T0+1
        L += [valu(f"v_mov_b32 v{t2}, v{t}", [t], [t2]),
              I(f"v_permlane16_swap_b32 v{t}, v{t2}", rd=[t,t2], wr=[t,t2], k="perm"),
              valu(f"v_add_f32 v{t}, v{t}, v{t2}", [t,t2], [t]),
              valu(f"v_mov_b32 v{t2}, v{t}", [t], [t2]),
              I(f"v_permlane32_swap_b32 v{t}, v{t2}", rd=[t,t2], wr=[t,t2], k="perm"),
              valu(f"v_add_f32 v{t}, v{t}, v{t2}", [t,t2], [t]),
              trans(f"v_rcp_f32 v{t}, v{t}", [t], [t])]
    for b in range(4):
        for m in range(4):
            L += epi_ops(b, m) + [o_store(b, m)]
    A_(raw("s_waitcnt vmcnt(0)"))
    return L

def q0_region(b):
    return (2 + b//2)*SLOT + (b & 1)*HALF

def kernel(force_slow=False):
    H = []
    a = lambda t: H.append(t)
    a(f"s_cmp_ge_u32 s2, 256")
    a(f"s_cbranch_scc1 L_end")
    a(f"s_load_dwordx4 s[68:71], s[0:1], 0")
    a(f"s_load_dwordx4 s[72:75], s[0:1], 16")
    a(f"v_lshrrev_b32 v{T0}, 6, v0")
    a(f"v_and_b32 v{T0+1}, 63, v0")
    a(f"v_readfirstlane_b32 s{sW}, v{T0}")
    if STAMP:
        a("s_load_dwordx2 s[96:97], s[0:1], 40")
        a("s_memrealtime s[98:99]")
        a(f"v_mov_b32 v253, v{T0+1}")
        a("v_mov_b32 v254, 0"); a("v_mov_b32 v255, 0")
        a("s_mov_b32 s93, 0")
        for x in stamp_ops(254): a(x.t)
        a("v_mov_b32 v239, s98"); a("v_cndmask_b32 v255, v255, v239, vcc")
        a("s_mov_b32 s93, 1")
    a(f"s_and_b32 s{sT}, s2, 7")
    a(f"s_lshr_b32 s{sT+1}, s2, 3")
    a(f"s_lshl_b32 s{sT}, s{sT}, 5")
    def item_tab(r):
        a(f"s_add_u32 s{sT+2}, s{sT+1}, {32*r}")
        a(f"s_mul_i32 s63, s{sT+2}, 171")
        a(f"s_lshr_b32 s63, s63, 9")
        a(f"s_mul_i32 s62, s63, 3")
        a(f"s_sub_u32 s62, s{sT+2}, s62")
        a(f"s_add_u32 s63, s63, s{sT}")
        a(f"s_lshl_b32 s{sKV+r}, s63, 17")
        a(f"s_mul_i32 s{sQO+r}, s63, 188416")
        a(f"s_lshl_b32 s62, s62, 2")
        a(f"s_add_u32 s62, s62, s{sW}")
        a(f"s_cmp_eq_u32 s62, 11")
        a(f"s_cselect_b32 s{sHN+r}, 0, {QBYTES}")
        a(f"s_lshl_b32 s62, s62, 14")
        a(f"s_add_u32 s{sQO+r}, s{sQO+r}, s62")
    item_tab(0)
    l = T0+1
    a(f"v_and_b32 v{T0+2}, 15, v{l}")
    a(f"v_lshrrev_b32 v{T0+3}, 4, v{l}")
    a(f"v_lshlrev_b32 v{T0+4}, 12, v{T0+3}")
    a(f"v_lshl_add_u32 v{T0+12}, v{T0+2}, 4, v{T0+4}")
    a(f"v_lshl_add_u32 v{DV}, v{T0}, 10, v{T0+12}")
    a(f"v_lshrrev_b32 v{T0+5}, 2, v{l}")
    a(f"v_and_b32 v{T0+6}, 3, v{l}")
    a(f"v_lshlrev_b32 v{T0+4}, 8, v{T0+5}")
    a(f"v_lshl_add_u32 v{OV}, v{T0+6}, 4, v{T0+4}")
    a(f"s_mul_i32 s{sW4224}, s{sW}, {4*PITCH}")
    for b in range(4):
        a(f"s_add_u32 s{sQS+b}, s{sQO}, {b*4096}")
    for (s, nb) in ((SK, KBYTES), (SV, KBYTES), (SQL, QBYTES), (SQH, f"s{sHN}"), (SOL, 0), (SOH, 0)):
        a(f"s_mov_b32 s{s+2}, {nb}")
        a(f"s_mov_b32 s{s+3}, 0x00020000")
    a(f"s_waitcnt lgkmcnt(0)")
    for (s, p) in ((SK, 70), (SQL, 68), (SQH, 68), (SV, 72), (SOL, 74), (SOH, 74)):
        a(f"s_mov_b32 s{s}, s{p}")
        a(f"s_mov_b32 s{s+1}, s{p+1}")
    st = [raw(t) for t in H]
    st += now(kv_dma(0))
    for b in range(4):
        for s in range(4):
            st.append(salu(f"s_add_u32 m0, s{sW4224}, {q0_region(b) + s*(1024-64)}"))
            st.append(salu("s_nop 0"))
            st.append(I(f"buffer_load_dwordx4 v{OV}, {srd(SQL if b < 2 else SQH)}, s{sQS+b} offen offset:{s*64} lds", rd=[OV], k="vmem"))
    st += now(kv_dma(1))
    H = []
    item_tab(1); item_tab(2)
    for r in range(3):
        a(f"s_mov_b32 s{84+r}, s{sKV+r}")
        a(f"s_mov_b32 s{87+r}, s{sQO+r}")
        a(f"s_mov_b32 s{90+r}, s{sHN+r}")
    a(f"s_mov_b32 s{sC}, {CSCALE}")
    a(f"s_mov_b32 s{sT+3}, {CSCALE | 0x80000000}")
    a(f"s_mov_b32 s{sTHR}, {THRESH if not force_slow else 0}")
    a(f"s_mov_b32 s{sFLAG}, 0")
    a(f"s_mov_b32 s{sLV}, {QBYTES}")
    a(f"s_mov_b32 s{sNN}, {KBYTES}")
    a(f"s_mov_b32 s{sITEM}, 0")
    for b in range(4):
        a(f"s_mov_b32 s{sOO+b}, 0")
    a(f"v_lshlrev_b32 v{T0+4}, 8, v{T0+2}")
    a(f"v_lshl_add_u32 v{QV}, v{T0+3}, 4, v{T0+4}")
    a(f"v_mul_u32_u24 v{T0+4}, {PITCH}, v{T0+2}")
    a(f"v_lshl_add_u32 v{AK0}, v{T0+3}, 4, v{T0+4}")
    a(f"v_add_u32 v{AK2}, {2*SLOT}, v{AK0}")
    a(f"v_mul_u32_u24 v{T0+4}, {PITCH}, v{T0+5}")
    a(f"v_lshl_add_u32 v{T0+4}, v{T0+6}, 3, v{T0+4}")
    a(f"v_add_u32 v{AV0}, {HALF}, v{T0+4}")
    a(f"v_add_u32 v{AV2}, {2*SLOT}, v{AV0}")
    a(f"s_mul_i32 s{sT}, s{sW}, {STGW}")
    a(f"s_add_u32 s{sT}, s{sT}, {STG}")
    a(f"v_mul_u32_u24 v{T0+4}, 80, v{T0+2}")
    a(f"v_lshl_add_u32 v{T0+4}, v{T0+3}, 3, v{T0+4}")
    a(f"v_add_u32 v{SW}, s{sT}, v{T0+4}")
    a(f"v_mul_u32_u24 v{T0+4}, 80, v{T0+5}")
    a(f"v_lshl_add_u32 v{T0+4}, v{T0+6}, 4, v{T0+4}")
    a(f"v_add_u32 v{SR}, s{sT}, v{T0+4}")
    a(f"s_add_u32 s{sT}, s{sW4224}, {2*SLOT}")
    a(f"v_lshlrev_b32 v{T0+4}, 6, v{T0+2}")
    a(f"v_lshl_add_u32 v{T0+4}, v{T0+3}, 4, v{T0+4}")
    a(f"v_add_u32 v{QR}, s{sT}, v{T0+4}")
    a(f"v_mov_b32 v{T0+4}, 0x3f803f80")
    for r in range(4): a(f"v_accvgpr_write_b32 {vr(ONES+r)}, v{T0+4}")
    for b in range(4):
        a(f"s_add_u32 s{sQS+b}, s{sQO+1}, {b*4096}")
    a(f"s_mov_b32 s{SQH+2}, s{sHN+1}")
    if STAMP:
        for x in stamp_ops(254): a(x.t)
    a(f"s_waitcnt vmcnt(24)")
    a(f"s_barrier")
    st += [raw(t) for t in H]
    GP = [g for g in grp_list() if g[0] == "K"]
    for j in range(D):
        st += frag_reads(*GP[j], j % NF, 0)
    for b in range(4):
        st.append(raw(f"s_waitcnt vmcnt({8 + 4*(3-b)})"))
        for s in range(4):
            st.append(ds128(Q0 + b*16 + s*4, QR, q0_region(b) - 2*SLOT + s*1024))
    st.append(raw("s_waitcnt lgkmcnt(0)", k="waitlgkm0"))
    if STAMP:
        st += stamp_ops(255) + [raw("s_add_u32 s93, s93, 1")]
    out, pend = fin(st, [], [])
    T = [text(out)]
    names = ["P", "B0f", "B1", "B2", "B3", "B4", "B5", "B6", "B7", "B0", "E"]
    raws = {k: body(k) for k in names}
    info = {k: vm_info(v) for k, v in raws.items()}
    preds = {"B0f": [("P",)], "B1": [("P", "B0f"), ("B7", "B0")], "B2": [("B0f", "B1"), ("B0", "B1")],
             "B3": [("B1", "B2")], "B4": [("B2", "B3")], "B5": [("B3", "B4")], "B6": [("B4", "B5")],
             "B7": [("B5", "B6")], "B0": [("B6", "B7")]}
    vm = {"P": info["P"][0], "B0f": 8 + info["B0f"][0]}
    for k, ps in preds.items():
        if k == "B0f": continue
        vm[k] = min(info[p2][2] + info[p1][1] + info[k][0] for p2, p1 in ps)
    for k, v in raws.items():
        for i in v:
            if "@VM@" in i.t:
                assert vm[k] <= 63
                i.t = i.t.replace("@VM@", str(vm[k]))
    fz = {}; pe = {}
    def do(k, pk):
        o, p = fin(raws[k], pe[pk], fz[pk])
        if k in fz: assert [i.t for i in o] == [i.t for i in fz[k]], f"{k} differs after {pk}"
        fz[k] = o; pe[k] = p
    fz["pro"] = out; pe["pro"] = pend
    for k, pk in (("P", "pro"), ("B0f", "P"), ("B1", "B0f"), ("B2", "B1"), ("B3", "B2"), ("B4", "B3"), ("B5", "B4"), ("B6", "B5"),
                  ("B7", "B6"), ("B0", "B7"), ("B1", "B0"), ("E", "B6")):
        do(k, pk)
    T.append(text(fz["P"])); T.append(text(fz["B0f"]))
    T.append("L_B1:")
    for k in ("B1", "B2", "B3", "B4", "B5", "B6"): T.append(text(fz[k]))
    T.append(f"    s_cmp_eq_u32 s{sITEM}, 2\n    s_cbranch_scc1 L_E")
    T.append(text(fz["B7"])); T.append(text(fz["B0"]))
    T.append(f"    s_add_u32 s{sITEM}, s{sITEM}, 1\n    s_branch L_B1")
    T.append("L_E:")
    T.append(text(fz["E"]))
    if STAMP:
        X = [x.t for x in stamp_ops(254)] + ["s_waitcnt vmcnt(0)"] + [x.t for x in stamp_ops(255)]
        X += ["s_add_u32 s93, s93, 1", "s_memrealtime s[98:99]", "s_waitcnt lgkmcnt(0)", "v_mov_b32 v239, s98",
              "v_cmp_eq_u32 vcc, s93, v253", "s_nop 1", "v_cndmask_b32 v255, v255, v239, vcc",
              "s_getreg_b32 s94, hwreg(HW_REG_XCC_ID)", "v_mov_b32 v239, s94", "v_cndmask_b32 v254, v254, v239, vcc",
              "s_mov_b32 s98, 0x10000000", "s_mov_b32 s99, 0x00020000",
              f"s_lshl_b32 s94, s2, 2", f"s_add_u32 s94, s94, s{sW}", "s_lshl_b32 s94, s94, 9",
              "v_lshlrev_b32 v239, 3, v253", "buffer_store_dwordx2 v[254:255], v239, s[96:99], s94 offen"]
        T.append("\n".join("    " + x for x in X))
    T.append(f"    s_cmp_eq_u32 s{sFLAG}, 0\n    s_cbranch_scc1 L_end")
    T.append(f"    s_waitcnt vmcnt(0) lgkmcnt(0)\n    s_barrier\n    s_mov_b32 s{sITEM}, 0")
    T.append(f"    s_mul_i32 s{sRD}, s{sW}, {SLOT}\n    v_add_u32 v{AK2}, s{sRD}, v{AK0}\n    v_add_u32 v{AV2}, s{sRD}, v{AV0}")
    T.append("L_slow_item:")
    T.append(f"    s_bitcmp1_b32 s{sFLAG}, 2\n    s_cbranch_scc0 L_slow_next")
    T.append(f"    s_mov_b32 s83, s84\n    s_mov_b32 s80, s87\n    s_mov_b32 s81, s90")
    sp, _ = fin(slow_path(), [], [])
    T.append(text(sp))
    T.append("L_slow_next:")
    T.append(f"    s_lshl_b32 s{sFLAG}, s{sFLAG}, 1\n    s_mov_b32 s84, s85\n    s_mov_b32 s85, s86\n    s_mov_b32 s87, s88\n    s_mov_b32 s88, s89\n    s_mov_b32 s90, s91\n    s_mov_b32 s91, s92")
    T.append(f"    s_add_u32 s{sITEM}, s{sITEM}, 1\n    s_cmp_lt_u32 s{sITEM}, 3\n    s_cbranch_scc1 L_slow_item")
    T.append("L_end:")
    stats = {k: cost(fz[k]) for k in names}
    tot = stats["P"][0] + stats["B0f"][0] + 3*sum(stats[f"B{i}"][0] for i in range(1, 7)) + 2*(stats["B7"][0] + stats["B0"][0]) + stats["E"][0]
    return "\n".join(T), (stats, vm, tot)

def cost(stream):
    t = 0; vfree = 0; mfree = 0
    for i in stream:
        if i.k == "mfma":
            t = max(t, vfree, mfree); vfree = t + 8; mfree = t + 16; t += 4
        elif i.k in ("valu", "perm", "ds", "vmem", "trans", "dsw"):
            t = max(t, vfree); t += icost(i); vfree = t
        elif i.k == "label": pass
        else:
            t += 4*states(i)
    return t, len(stream)

HEADER = open("standalone__mha_softmax__near_ridge.s.ref").read().split("; Override launch")[0]

def emit(path, **kw):
    bodytxt, stats = kernel(**kw)
    s = HEADER
    s += f"; @launch grid=(256,1,1) block=(256,1,1) lds={LDS_BYTES}\n"
    s += f""".amdgcn_target "amdgcn-amd-amdhsa--gfx950"
.text
.globl {NAME}_kernel
.p2align 8
.type {NAME}_kernel,@function
{NAME}_kernel:
{bodytxt}
    s_endpgm
.section .rodata,"a"
.p2align 6
.amdhsa_kernel {NAME}_kernel
  .amdhsa_next_free_vgpr 512
  .amdhsa_next_free_sgpr 102
  .amdhsa_accum_offset 256
  .amdhsa_group_segment_fixed_size 0
  .amdhsa_kernarg_size 48
  .amdhsa_user_sgpr_count 2
  .amdhsa_user_sgpr_kernarg_segment_ptr 1
  .amdhsa_system_sgpr_workgroup_id_x 1
.end_amdhsa_kernel
"""
    open(path, "w").write(s)
    return stats

if __name__ == "__main__":
    ap = argparse.ArgumentParser()
    ap.add_argument("-o", default=f"cdna_kernels/{NAME}.s")
    ap.add_argument("--force-slow", action="store_true")
    ap.add_argument("--stamp", type=int, default=0)
    ap.add_argument("--opt", action="append", default=[])
    args = ap.parse_args()
    STAMP = args.stamp
    for o in args.opt:
        k, v = o.split("=")
        OPT[k] = eval(v)
    print(emit(args.o, force_slow=args.force_slow))
```
